```python
import torch

def _softmax(x, axis=-1):
    return torch.softmax(x, dim=axis)
def _gelu(x):
    return torch.nn.functional.gelu(x, approximate="tanh")
def _silu(x):
    return torch.nn.functional.silu(x)
def _sigmoid(x):
    return torch.sigmoid(x)
def _layernorm(x, axis=-1, eps=1e-5):
    m = x.mean(dim=axis, keepdim=True)
    v = x.var(dim=axis, keepdim=True, unbiased=False)
    return (x - m) / torch.sqrt(v + eps)
def _scatter_add(tgt, idx, src, axis=0):
    return tgt.clone().index_add_(axis, idx, src)
def _segment_sum(src, seg, n):
    out = torch.zeros((n,) + src.shape[1:], dtype=src.dtype)
    return out.index_add_(0, seg, src)
def _pad(x, pw):
    flat = tuple(v for pair in reversed(pw) for v in pair)
    return torch.nn.functional.pad(x, flat)

kernel_name = 'parallel_sum__ssm_conv_s4d__mixer_channel_mlp__prompt'

def setup_inputs():

    _w = (lambda a: (lambda t: t.to(torch.bfloat16) if t.is_floating_point() else t)(torch.as_tensor(a)))
    def _A_setup():
        Bsz, L, D, N = 1, 2048, 640, 128
        return {
            "u": _w((lambda *s: torch.randn(*s, dtype=torch.bfloat16) * 0.05)(Bsz, L, D)),
            "log_A_real": _w((lambda *s: torch.randn(*s, dtype=torch.bfloat16) * 3.2)(D, N) * 0.5),
            "A_imag": _w((lambda *s: torch.randn(*s, dtype=torch.bfloat16) * 0.05)(D, N) * 3.14),
            "C_real": _w((lambda *s: torch.randn(*s, dtype=torch.bfloat16) * 0.1)(D, N) / N ** 0.5),
            "C_imag": _w((lambda *s: torch.randn(*s, dtype=torch.bfloat16) * 0.2)(D, N) / N ** 0.5),
            "log_dt": _w((lambda *s: torch.randn(*s, dtype=torch.bfloat16) * 0.05)(D) * 0.5 - 4.0),
            "D_skip": _w((lambda *s: torch.randn(*s, dtype=torch.bfloat16) * 0.05)(D)),
        }
    _A_in = _A_setup()

    def _B_setup():
        B, S, D, F = 1, 2048, 640, 1728
        return {
            "x": _w((lambda *s: torch.randn(*s, dtype=torch.bfloat16) * 0.05)(B, S, D)),
            "w1": _w((lambda *s: torch.randn(*s, dtype=torch.bfloat16) * 1.6)(D, F) * (D ** -0.5)),
            "b1": _w((lambda *s: torch.randn(*s, dtype=torch.bfloat16) * 0.8)(F)),
            "w2": _w((lambda *s: torch.randn(*s, dtype=torch.bfloat16) * 0.05)(F, D) * (F ** -0.5)),
            "b2": _w((lambda *s: torch.randn(*s, dtype=torch.bfloat16) * 0.05)(D)),
        }
    _B_in = _B_setup()

    return {
        "A_u": _A_in["u"],
        "A_log_A_real": _A_in["log_A_real"],
        "A_A_imag": _A_in["A_imag"],
        "A_C_real": _A_in["C_real"],
        "A_C_imag": _A_in["C_imag"],
        "A_log_dt": _A_in["log_dt"],
        "A_D_skip": _A_in["D_skip"],
        "B_x": _B_in["x"],
        "B_w1": _B_in["w1"],
        "B_b1": _B_in["b1"],
        "B_w2": _B_in["w2"],
        "B_b2": _B_in["b2"],
    }

def reference(A_u, A_log_A_real, A_A_imag, A_C_real, A_C_imag, A_log_dt, A_D_skip, B_x, B_w1, B_b1, B_w2, B_b2):
    def _A_ref(u, log_A_real, A_imag, C_real, C_imag, log_dt, D_skip):
        L = u.shape[1]
        dt = torch.exp(log_dt)
        A = -torch.exp(log_A_real) + 1j * A_imag
        C = (C_real + 1j * C_imag) * dt[:, None]
        pos = (lambda x, dt: x.to(dt))(torch.arange(L), log_dt.dtype)
        P = torch.exp((A * dt[:, None])[:, :, None] * pos[None, None, :])
        K = 2.0 * torch.einsum("dn,dnl->dl", C, P).real
        L2 = 2 * L
        u_t = (lambda x, *d: x.permute(*d))(u, 0, 2, 1)
        Kf = (lambda x, *a, **k: torch.fft.rfft(x.float(), *a, **k))(K, L2)
        Uf = (lambda x, *a, **k: torch.fft.rfft(x.float(), *a, **k))(u_t, L2)
        y = (lambda x, *a, **k: torch.fft.irfft(x, *a, **k).to(torch.bfloat16))(Uf * Kf[None, :, :], L2)[:, :, :L]
        y = (lambda x, *d: x.permute(*d))(y, 0, 2, 1)
        return y + u * D_skip[None, None, :]

    def _B_ref(x, w1, b1, w2, b2):
        y = _layernorm(x, axis=-1)
        h = _gelu(torch.einsum("bsd,df->bsf", y, w1) + b1)
        return torch.einsum("bsf,fd->bsd", h, w2) + b2

    x = A_u
    xn = _layernorm(x, axis=-1)
    return x + _A_ref(xn, A_log_A_real, A_A_imag, A_C_real, A_C_imag, A_log_dt, A_D_skip) + _B_ref(xn, B_w1, B_b1, B_w2, B_b2)
```

```python
import re, subprocess, os

TRANS = ('v_exp_f32','v_log_f32','v_rcp_f32','v_rsq_f32','v_sqrt_f32','v_sin_f32','v_cos_f32')
class Op:
    __slots__=('text','kind','tok','region','w','r','cost','note')
    def __init__(s, text, kind='i', tok=None, cost=1):
        s.text=text; s.kind=kind; s.tok=tok; s.region=(); s.cost=cost; s.w=None; s.r=None
    def __repr__(s): return f'<{s.kind}:{s.text}>'

class Tok:
    def __init__(s, name=''):
        s.name=name; s.alts=[]

_reg = re.compile(r'(?<![\w.])(-|abs\()?([vas])(?:\[(\d+):(\d+)\]|(\d+))(?![\w])')
def regs(txt):
    out=[]
    for m in _reg.finditer(txt):
        k=m.group(2)
        if m.group(3) is not None: out += [(k,i) for i in range(int(m.group(3)), int(m.group(4))+1)]
        else: out.append((k,int(m.group(5))))
    if re.search(r'\bvcc(_lo|_hi)?\b', txt): out += [('s','vcc')]
    if re.search(r'\bm0\b', txt): out += [('s','m0')]
    if re.search(r'\bexec\b', txt): out += [('s','exec')]
    return out

def parse(text):
    t=text.split(';')[0].strip()
    sp=t.split(None,1); mn=sp[0]; rest=sp[1] if len(sp)>1 else ''
    ops=[o.strip() for o in rest.split(',')]
    base=re.sub(r'_e32$|_e64$|_dpp$','',mn)
    W=[];R=[]
    allr=lambda l: [x for o in l for x in regs(o)]
    if base.startswith('v_mfma'):
        W=regs(ops[0]); R=allr(ops[1:])
    elif base.startswith(('ds_write','buffer_store','global_store','global_atomic','buffer_atomic')):
        R=allr(ops)
    elif base.startswith('global_load_lds') or (base.startswith('buffer_load') and re.search(r'\blds\b', rest)):
        R=allr(ops)+[('s','m0')]
    elif base.startswith(('ds_read','buffer_load','global_load','s_load')):
        W=regs(ops[0]); R=allr(ops[1:])
        if 'd16' in base: R+=W
    elif base.startswith(('s_cmp','s_waitcnt','s_cbranch','s_branch','s_barrier','s_nop','s_sleep','s_setprio','s_endpgm')):
        R=allr(ops)
        if base.startswith('s_cbranch_vcc'): R+=[('s','vcc')]
    elif base.startswith('v_permlane') and 'swap' in base:
        W=allr(ops[:2]); R=allr(ops[:2])
    elif base in('v_add_co_u32','v_addc_co_u32','v_sub_co_u32'):
        W=allr(ops[:2]); R=allr(ops[2:])
    else:
        W=regs(ops[0]); R=allr(ops[1:])
        if base.startswith(('v_fmac','v_dot2c','v_pk_fmac')) or mn.endswith('_dpp'): R+=W
        if 'saveexec' in base: W+=[('s','exec')]; R+=[('s','exec')]
    return base,mn,W,R,ops

class Prog:
    def __init__(s):
        s.ops=[]; s.reg=(); s._rid=0
    def add(s, op):
        op.region=s.reg; s.ops.append(op); return op
    def i(s, text, cost=1):
        for l in text.strip().split('\n'):
            l=l.strip()
            if not l or l.startswith(';'): continue
            s.add(Op(l,'i',cost=cost))
    def label(s, name): s.add(Op(name+':','label'))
    def raw(s, text): s.add(Op(text,'raw'))
    def vm(s, text, tok=None):
        t=tok or Tok(); o=Op(text,'vm',t); t.alts.append(o); s.add(o); return t
    def ds(s, text, tok=None):
        t=tok or Tok(); o=Op(text,'ds',t); t.alts.append(o); s.add(o); return t
    def wvm(s, tok): s.add(Op('','wvm',tok))
    def wds(s, tok): s.add(Op('','wds',tok))
    def wvm0(s): s.add(Op('s_waitcnt vmcnt(0)','wvm0'))
    def wds0(s): s.add(Op('s_waitcnt lgkmcnt(0)','wds0'))
    def push(s, name=None):
        s._rid+=1; s.reg=s.reg+(name or s._rid,)
    def pop(s): s.reg=s.reg[:-1]
    def extend(s, ops):
        for o in ops: s.add(o)

class Sub(Prog):
    pass

def merge(prim, sec, budget):
    out=[]; k=0
    for g,grp in enumerate(prim):
        out+=grp
        b=budget(g)
        while k<len(sec) and (b>=sec[k].cost or sec[k].kind in('wvm','wds') and False):
            b-=sec[k].cost; out.append(sec[k]); k+=1
    out+=sec[k:]
    return out

def _vis(x, w):
    return w.region[:len(x.region)]==x.region

def resolve_waits(ops):
    out=[]
    pos={id(o):n for n,o in enumerate(ops)}
    known=[]
    for n,o in enumerate(ops):
        if o.kind in('wvm','wds'):
            k=o.kind[1:]
            alts=[a for a in o.tok.alts if id(a) in pos and pos[id(a)]<n]
            comp=[a for a in alts if _vis(a,o)]
            if comp: alts=comp[-1:]
            assert alts, ('wait on unissued token', o.tok.name)
            P=tuple(pos[id(a)] for a in alts)
            def sat(kk,pp,ww):
                if kk!=k or not _vis(ww,o): return False
                if len(pp)==1: return pp[0]>=max(P)
                return len(pp)==len(P) and all(x>=y for x,y in zip(pp,P))
            if any(sat(*e) for e in known): continue
            cnt=min(sum(1 for x in ops[p+1:n] if x.kind==k and (_vis(x,o) or _vis(x,a))) for p,a in zip(P,alts))
            mx=63 if k=='vm' else 15
            cnt=min(cnt,mx)
            w=Op(f's_waitcnt {"vmcnt" if k=="vm" else "lgkmcnt"}({cnt})','i'); w.region=o.region
            out.append(w); known.append((k,P,o))
        elif o.kind in('wvm0','wds0'):
            k=o.kind[1:3]; known.append((k,(n,),o)); w=Op(o.text,'i'); w.region=o.region; out.append(w)
        else: out.append(o)
    f=[]
    for o in out:
        if f and o.text.startswith('s_waitcnt') and f[-1].text.startswith('s_waitcnt') and f[-1].region==o.region:
            a=dict(re.findall(r'(\w+)\((\d+)\)',f[-1].text)); b=dict(re.findall(r'(\w+)\((\d+)\)',o.text))
            for kk,v in b.items(): a[kk]=str(min(int(v),int(a.get(kk,99))))
            f[-1].text='s_waitcnt '+' '.join(f'{kk}({v})' for kk,v in a.items())
        else: f.append(o)
    return f

def _isvalu(b): return b.startswith('v_') and not b.startswith('v_mfma')
def _ismem(b): return b.startswith(('ds_','buffer_','global_'))
def _isvmem(b): return b.startswith(('buffer_','global_'))
def passes(b): return 8 if '32x32' in b else 4

def need(pb,pW,pR,pops,cb,cmn,cW,cR,cops):
    n=0
    sW=set(pW);
    vW={x for x in sW if x[0] in 'va'}; sgW={x for x in sW if x[0]=='s'}
    cRs=set(cR); cWs=set(cW)
    if _isvalu(pb):
        if vW & cRs:
            if cb.startswith('v_mfma'): n=max(n,2)
            if cb.startswith('v_permlane') or cmn.endswith('_dpp'): n=max(n,2)
            if cb in('v_readfirstlane_b32','v_readlane_b32'): n=max(n,1)
            if pb in TRANS and cb not in TRANS: n=max(n,1)
        if pb.startswith('v_dot') and vW & (cRs|cWs):
            if cb!=pb: n=max(n,3)
            elif vW & set(regs(cops[1])+regs(cops[2])): n=max(n,3)
        if sgW & cRs:
            if _isvalu(cb) or cb.startswith('v_mfma'): n=max(n,2)
            if _isvmem(cb): n=max(n,5)
            if cb.startswith('s_'): n=max(n,1)
    if pb.startswith('v_mfma'):
        P=passes(pb); D=set(regs(pops[0])); C=set(regs(pops[3]))
        if cb.startswith('v_mfma'):
            if D & set(regs(cops[1])+regs(cops[2])): n=max(n,P+4)
            c2=set(regs(cops[3]))
            if D & c2 and not (c2==D and passes(cb)==P): n=max(n,P+2)
            d2=set(regs(cops[0]))
            if D & d2 and not (c2==D): n=max(n,P+2)
        else:
            if D & (cRs|cWs) and (_isvalu(cb) or _ismem(cb)): n=max(n,P+4)
            if C & cWs and _isvalu(cb): n=max(n,P-1)
    if pb.startswith('s_') and ('s','m0') in sW and _isvmem(cb) and ('s','m0') in cRs: n=max(n,1)
    if pb.startswith(('buffer_store_dwordx4','buffer_store_dwordx3','global_store_dwordx4','global_store_dwordx3')):
        data=set(regs(pops[0] if pb.startswith('buffer') else pops[1]))
        if data & cWs: n=max(n,2)
    return n

def hazards(ops, verbose=False):
    out=[]; info=[]
    tot=0
    for o in ops:
        if o.kind in('label','raw'): out.append(o); continue
        cb,cmn,cW,cR,cops=parse(o.text)
        dist=0; req=0
        for (p,pi) in reversed(info[-24:]):
            if dist>=20: break
            pb,pmn,pW,pR,pops=pi
            nd=need(pb,pW,pR,pops,cb,cmn,cW,cR,cops)
            if nd>dist: req=max(req,nd-dist)
            if _vis(p,o):
                dist+= (int(pops[0])+1) if pb=='s_nop' else 1
        if req>0:
            tot+=req
            nop=Op(f's_nop {req-1}','i'); nop.region=o.region; out.append(nop); info.append((nop,parse(nop.text)))
            if verbose: print('pad',req,'before',o.text)
        out.append(o); info.append((o,(cb,cmn,cW,cR,cops)))
    return out,tot

def sizes(lines):
    src='.amdgcn_target "amdgcn-amd-amdhsa--gfx950"\n.text\n'+'\n'.join(lines)+'\n'
    r=subprocess.run(['llvm-mc','-triple=amdgcn-amd-amdhsa','-mcpu=gfx950','-show-encoding'],input=src,capture_output=True,text=True)
    if r.returncode!=0:
        print(r.stderr[:3000]); raise SystemExit('mc failed')
    res=[]
    for l in r.stdout.split('\n'):
        m=re.search(r'^\s*(\S.*?)\s*; encoding: \[(.*)\]',l)
        if m: res.append((m.group(1), len(m.group(2).split(','))))
    return res

def align8(ops, minrun=5):
    ins=[o for o in ops if o.kind not in('label','raw')]
    labs=[o.text for o in ops if o.kind=='label']
    sz=sizes([o.text for o in ops if o.kind!='raw'])
    assert len(sz)==len(ins),(len(sz),len(ins))
    size={id(o):s[1] for o,s in zip(ins,sz)}; canon={id(o):s[0] for o,s in zip(ins,sz)}
    def promotable(o):
        c=canon[id(o)].split()[0]
        if size[id(o)]!=4 or not c.endswith('_e32'): return False
        if c.startswith(('v_readfirstlane','v_permlane','v_nop','v_dot2c','v_cndmask','v_addc','v_fmac')): return False
        return True
    out=[]; addr=0; mis=0; pads=0
    run4=[]
    for idx,o in enumerate(ops):
        if o.kind in('label','raw'):
            out.append(o); continue
        s=size[id(o)]
        if s==8 and addr%8==4:
            cand=[q for q,a in run4 if a%8==0 and promotable(q)]
            if cand:
                p=cand[-1]; mn=p.text.split()[0]; mn2=re.sub(r'_e32$','',mn)+'_e64'
                p.text=p.text.replace(mn,mn2,1); size[id(p)]=8; addr+=4
            else:
                run=0
                for q in ops[idx:]:
                    if q.kind in('label','raw'): continue
                    if size[id(q)]==8 or promotable(q): run+=size[id(q)]==8
                    else: break
                if run>=minrun:
                    nop=Op('s_nop 0','i'); size[id(nop)]=4; canon[id(nop)]='s_nop'; out.append(nop); addr+=4; pads+=1
                else: mis+=1
        out.append(o)
        if s==4: run4.append((o,addr))
        else: run4=[]
        addr+=s
    return out,addr,mis,pads

def render(ops):
    L=[]
    for o in ops:
        L.append(o.text if o.kind in('label','raw') else '    '+o.text)
    return '\n'.join(L)+'\n'
```

```python
from gen import *
from gen_g import spread
UO=0; K0=4608; K1=8768; TB=12928
YST=16384; XST=29696; OST=32768

def expand(q):
    q.i(f'''
    v_cmp_eq_u32 vcc, 0, v0
    v_and_b32 v40, 15, v0
    v_lshrrev_b32 v41, 4, v0
    v_cndmask_b32 v42, 0, v39, vcc
    v_add_f32 v26, v26, v42
    s_add_u32 s56, s65, {TB}
    v_lshrrev_b32 v42, 5, v0
    v_bfe_u32 v43, v0, 4, 1
    v_lshlrev_b32 v44, 4, v40
    v_lshl_add_u32 v44, v42, 8, v44
    v_lshl_add_u32 v44, v43, 3, v44
    v_add_u32 v44, s56, v44
    v_lshlrev_b32 v45, 3, v40
    v_lshl_add_u32 v45, v43, 7, v45
    v_lshlrev_b32 v46, 2, v40
    v_lshl_add_u32 v46, v43, 7, v46
    v_add_u32 v46, {784-528}, v46
    v_cmp_gt_u32 vcc, 32, v0
    v_mov_b32 v47, 60
    v_cndmask_b32 v45, v46, v45, vcc
    v_cndmask_b32 v47, v47, 0, vcc
    v_add_u32 v45, s56, v45
    v_lshlrev_b32 v46, 1, v40
    v_lshl_add_u32 v46, v41, 7, v46
    v_add_u32 v46, s56, v46
    v_add_u32 v47, v47, v45
    v_mov_b32 v48, 0
    v_mov_b32 v49, 0
    v_mov_b32 v50, 0
    v_mov_b32 v51, 0''')
    for t in range(3):
        q.i(f'v_cvt_pk_bf16_f32 v{52+2*t}, v{26+4*t}, v{27+4*t}\nv_cvt_pk_bf16_f32 v{53+2*t}, v{28+4*t}, v{29+4*t}')
    q.i(f'v_mov_b32 v58, s56')
    q.ds('ds_write_b128 v58, v[48:51]')
    q.ds('ds_write_b64 v44, v[52:53] offset:16')
    q.ds('ds_write_b32 v45, v54 offset:528'); q.ds('ds_write_b32 v47, v55 offset:532')
    q.i('s_mov_b32 exec_lo, -1\ns_mov_b32 exec_hi, 0')
    q.ds('ds_write_b16 v46, v56 offset:1040'); q.ds('ds_write_b16_d16_hi v46, v56 offset:1072')
    q.ds('ds_write_b16 v46, v57 offset:1104'); q.ds('ds_write_b16_d16_hi v46, v57 offset:1136')
    q.i('s_mov_b32 exec_lo, 0\ns_mov_b32 exec_hi, 1')
    q.ds('ds_write_b16 v46, v56 offset:1040')
    q.i('s_mov_b64 exec, -1')
    q.i(f'''
    v_lshlrev_b32 v44, 4, v0
    v_add_u32 v44, 16, v44
    v_lshlrev_b32 v45, 3, v0
    v_add_u32 v45, {528-256}, v45
    v_cndmask_b32 v44, v45, v44, vcc
    v_add_u32 v44, s56, v44
    v_cmp_ge_u32 vcc, 32, v0
    v_add_u32 v45, -2, v44
    v_lshl_add_u32 v46, v0, 2, s56
    v_cndmask_b32 v45, v44, v45, vcc''')
    q.ds('ds_read_b64 v[60:61], v44'); q.ds('ds_read_b64 v[62:63], v44 offset:8'); ta=q.ds('ds_read_u16 v64, v45')
    tb=q.ds('ds_read2_b32 v[66:67], v46 offset0:196 offset1:197')
    q.i('v_add_u32 v47, 0x400, v46')
    tc=q.ds('ds_read2_b32 v[68:69], v47 offset0:4 offset1:5')
    q.i(f'''
    s_add_u32 s57, s65, {K0+255*16}
    v_sub_u32 v44, s57, v1
    v_lshlrev_b32 v45, 5, v0
    s_sub_u32 s57, s57, {128*16+16}
    v_sub_u32 v45, s57, v45
    s_mov_b32 s56, 0x01000302
    s_mov_b32 s57, 0x03020504
    s_mov_b32 s58, 0x01000100
    s_mov_b32 s61, 0x03020302
    s_mov_b32 s62, 0x01000504
    s_mov_b32 s63, 0x05040504''')
    P=lambda d,a,b,s_: q.i(f'v_perm_b32 v{d}, v{a}, v{b}, s{s_}')
    q.wds(ta)
    q.i('s_mov_b32 exec_lo, -1\ns_mov_b32 exec_hi, 0')
    P(72,63,63,56);P(73,62,62,56);P(74,61,61,56);P(75,60,60,56)
    P(76,63,62,57);P(77,62,61,57);P(78,61,60,57);P(79,60,64,62)
    q.i('s_mov_b32 exec_lo, 0\ns_mov_b32 exec_hi, -1')
    P(72,62,61,57);P(73,61,61,58);P(74,61,60,57);P(75,60,60,58)
    P(76,61,61,56);P(77,61,61,58);P(78,60,60,56);P(79,60,64,62)
    q.i('s_mov_b64 exec, -1')
    q.ds('ds_write_b128 v44, v[72:75]'); q.ds(f'ds_write_b128 v44, v[76:79] offset:{K1-K0}')
    q.wds(tb)
    P(80,67,67,58);P(81,66,66,61);P(82,66,66,56);P(83,66,66,58)
    P(84,67,66,57);P(85,66,66,61);P(86,66,66,58);P(87,66,66,58)
    q.i('v_add_u32 v46, -1024, v44')
    q.ds('ds_write_b128 v46, v[80:83]'); q.ds(f'ds_write_b128 v46, v[84:87] offset:{K1-K0}')
    q.wds(tc)
    P(72,68,68,61);P(73,68,68,56);P(74,68,68,58);P(75,68,68,58)
    P(76,68,68,61);P(77,68,68,58);P(78,68,68,58);P(79,68,68,58)
    q.ds('ds_write_b128 v45, v[72:75] offset:16'); q.ds(f'ds_write_b128 v45, v[76:79] offset:{K1-K0+16}')
    P(80,69,69,58);P(81,69,69,58);P(82,68,68,61);P(83,68,68,61)
    P(84,69,69,58);P(85,69,68,57);P(86,68,68,61);P(87,68,68,61)
    q.ds('ds_write_b128 v45, v[80:83]'); q.ds(f'ds_write_b128 v45, v[84:87] offset:{K1-K0}')
    q.i(f'''
    v_add_u32 v44, s65, v1
    v_and_b32 v45, 1, v0
    v_lshlrev_b32 v45, 4, v45
    v_bfe_u32 v46, v0, 1, 1
    v_mul_u32_u24 v46, {K1-K0}, v46
    v_add3_u32 v45, v45, v46, s65
    v_add_u32 v45, {K0+4096}, v45
    v_cmp_gt_u32 vcc, 32, v0
    s_nop 1
    v_cndmask_b32 v44, v45, v44, vcc''')
    q.ds('ds_write_b128 v44, v[48:51]')

CA=8; CB=40; CB2=72; CACC=80
HR=112; NHR=30
G2=8
def hreg(it,i,extra=False):
    k=(it*4+i)%NHR
    return HR+4*k

def h_setup(p):
    p.i(f'''
    s_lshl_b32 s56, s59, 2
    s_mul_i32 s90, s56, 55296
    s_lshl_b32 s57, s3, 10
    s_add_u32 s90, s90, s57
    s_add_u32 s90, s90, {HP}
    s_add_u32 s91, s90, {13*4096}
    s_cmp_lt_u32 s3, 2
    s_cselect_b32 s91, s91, {OOB:#x}
    s_lshl_b32 s79, s59, 7
    s_add_u32 s79, s79, {HF}''')
    for i in range(4):
        p.i(f's_add_u32 s56, s3, {1+i}\ns_and_b32 s56, s56, 3\ns_mul_i32 s56, s56, 55296\nv_add_u32 v{4+i}, s56, v1')
def h_load(p,S,it,i,first=False):
    if (i==0 or first) and 0<it<13: p.i(f's_add_u32 s92, s90, {it*4096}')
    so='s90' if it==0 else ('s91' if it==13 else 's92')
    r=hreg(it,i)
    return p.vm(f'buffer_load_dwordx4 v[{r}:{r+3}], v{4+i}, s[44:47], {so} offen sc1', S.ht.setdefault((it,i),Tok(f'h{it},{i}')))
def h_poll(p,tok):
    p.poll(tok, lambda: flags1_load(p,3,'s79'), lambda: check_all(p,3,28))

def conv(p,S):
    opt=p.opt
    S.ht={}
    NPRE=28
    p.i('s_cmp_eq_u32 s93, 0\ns_cbranch_scc0 L_skipconv'); p.push()
    q=Sub(); expand(q)
    q.i(f'''
    v_and_b32 v44, 3, v0
    v_mul_u32_u24 v44, 40960, v44
    v_lshrrev_b32 v45, 2, v0
    v_lshl_add_u32 v44, v45, 4, v44
    s_lshl_b32 s56, s3, 10
    s_add_u32 s56, s56, 512
    v_add_u32 v44, s56, v44''')
    q.wvm(S.tu)
    for m in range(4): q.ds(f'ds_write_b128 v44, v[{216+4*m}:{219+4*m}] offset:{256*m}')
    q.i(f'''
    v_and_b32 v44, 15, v0
    v_lshrrev_b32 v45, 4, v0
    v_lshlrev_b32 v3, 5, v44
    v_lshl_add_u32 v3, v45, 4, v3
    v_add_u32 v3, s65, v3
    v_lshrrev_b32 v46, 1, v44
    v_lshlrev_b32 v45, 2, v45
    v_sub_u32 v45, v45, v46
    v_lshlrev_b32 v45, 2, v45
    v_and_b32 v46, 1, v44
    v_xor_b32 v46, 1, v46
    v_mul_u32_u24 v46, {K1-K0}, v46
    v_add3_u32 v45, v45, v46, s65''')
    for g2 in range(4): q.i(f'v_add_u32 v{4+g2}, {K0+4*(1015-128*(2*g2+1)-112)}, v45')
    k0=S.w2next; n1=min(6,70-k0)
    spread(p,q.ops,[lambda p,k=k: w2p_load(p,k//5,k%5,k==k0) for k in range(k0,k0+n1)],0.0,0.95)
    k0+=n1
    p.wvm(S.th); set_flag(p,'s97',44)
    p.wds0(); p.i('s_barrier')
    p.stamp('e')
    ta={};tb={}
    def breg(j,c): return (CB+4*j) if (j>=2 or c%2==0) else CB2+4*j
    def rdA(q,g,c):
        o=128*(1-(g&1))+16*(7-c); r=CA+4*g
        q.ds(f'ds_read2_b32 v[{r}:{r+1}], v{4+g//2} offset0:{o} offset1:{o+1}')
        ta[g,c]=q.ds(f'ds_read2_b32 v[{r+2}:{r+3}], v{4+g//2} offset0:{o+2} offset1:{o+3}')
    def rdB(q,j,c):
        r=breg(j,c); tb[j,c]=q.ds(f'ds_read_b128 v[{r}:{r+3}], v3 offset:{480+512*j-64*c}')
    rdA(p,0,0)
    for j in range(7,-1,-1): rdB(p,j,0)
    for g in range(1,8): rdA(p,g,0)
    groups=[]
    for c in range(8):
        cnt=0
        for g in range(8):
            for j in range(7-g,-1,-1):
                q=Sub(); n=g+j; a=CACC+4*n
                q.wds(ta[g,c]); q.wds(tb[j,c])
                q.i(f'v_mfma_f32_16x16x32_bf16 v[{a}:{a+3}], v[{CA+4*g}:{CA+4*g+3}], v[{breg(j,c)}:{breg(j,c)+3}], '+('0' if (c==0 and g==0) else f'v[{a}:{a+3}]'))
                if c<7:
                    if j==7-g and j>=2: rdB(q,j,c+1)
                    if j==0: rdA(q,g,c+1)
                    if g==3 and j in (2,3): rdB(q,3-j,c+1)
                groups.append(q.ops)
    side={}
    def at(g,fn): side.setdefault(g,[]).append(fn)
    g=2
    for k in range(k0,70):
        at(g,lambda p,k=k: w2p_load(p,k//5,k%5,k==k0)); g+=4
    gp=int(opt.get('gpoll',130)); assert g<=gp, g
    def hs(p):
        p.i(f's_lshl_b32 s79, s59, 7\ns_add_u32 s79, s79, {HF}'); S.tf=flags1_load(p,2,'s79')
    at(gp,hs)
    S.hv=None
    def hp(p):
        p.poll(S.tf, lambda: flags1_load(p,2,'s79'), lambda: check_all(p,2,28))
        h_setup2(p)
    at(gp+24,hp)
    g=gp+26
    for k in range(NPRE):
        at(min(g,287),lambda p,k=k: h_load2(p,S,k//4,k%4)); g+=4
    for g,grp in enumerate(groups):
        for o in grp: p.add(o)
        for fn in side.get(g,[]): fn(p)
    p.stamp('f')
    p.i(f'''
    v_and_b32 v8, 15, v0
    v_lshlrev_b32 v8, 5, v8
    v_bfe_u32 v9, v0, 4, 1
    v_lshl_add_u32 v8, v9, 9, v8
    v_lshrrev_b32 v9, 5, v0
    v_lshl_add_u32 v8, v9, 4, v8
    s_lshl_b32 s56, s86, 2
    s_add_u32 s56, s56, s3
    s_lshl_b32 s57, s56, 12
    s_add_u32 s57, s57, {YB}
    s_mul_i32 s58, s34, {512-320}
    s_lshl_b32 s56, s56, 2
    s_add_u32 s58, s58, s56
    s_add_u32 s58, s58, {YF}''')
    for n in range(0,8,2):
        o=12+2*n
        for u in range(2):
            a=CACC+4*(n+u); p.i(f'v_cvt_pk_bf16_f32 v{o+2*u}, v{a}, v{a+1}\nv_cvt_pk_bf16_f32 v{o+2*u+1}, v{a+2}, v{a+3}')
    for n in range(0,8,2):
        o=12+2*n
        p.i(f'v_permlane16_swap_b32 v{o}, v{o+2}\nv_permlane16_swap_b32 v{o+1}, v{o+3}')
    for n in range(0,8,2):
        o=12+2*n
        S.ty=p.vm(f'buffer_store_dwordx4 v[{o}:{o+3}], v8, s[44:47], s57 offen '+(f'offset:{512*n} ' if n else '')+'sc1')
    p.i('s_mov_b32 s93, 0\ns_branch L_g2'); p.pop()
    p.label('L_skipconv'); p.push()
    for k in range(S.w2next,70): w2p_load(p,k//5,k%5,k==S.w2next)
    p.wvm(S.th); set_flag(p,'s97',44)
    p.pop()
    p.label('L_noconv'); p.push()
    p.i(f's_lshl_b32 s79, s59, 7\ns_add_u32 s79, s79, {HF}\ns_mov_b32 s93, 1'); t=flags1_load(p,2,'s79')
    p.poll(t, lambda: flags1_load(p,2,'s79'), lambda: check_all(p,2,28))
    h_setup2(p)
    for k in range(NPRE): h_load2(p,S,k//4,k%4)
    p.pop()
    p.label('L_g2')
    S.hnext=NPRE

HV=224
NH2=28
def hreg2(it,i): return HR+4*((it*4+i)%NH2)
def h_setup2(p):
    p.i(f'''
    s_mul_i32 s90, s59, {4*55296}
    s_lshl_b32 s57, s3, 10
    s_add_u32 s90, s90, s57
    s_add_u32 s90, s90, {HP}
    s_add_u32 s91, s90, {13*4096}
    s_cmp_lt_u32 s3, 2
    s_cselect_b32 s91, s91, {OOB:#x}''')
    for i in range(4):
        p.i(f's_add_u32 s56, s3, {1+i}\ns_and_b32 s56, s56, 3\ns_mul_i32 s56, s56, 55296\nv_add_u32 v{HV+i}, s56, v1')
def h_load2(p,S,it,i):
    if i==0 and 0<it<13: p.i(f's_add_u32 s92, s90, {it*4096}')
    so='s90' if it==0 else ('s91' if it==13 else 's92')
    r=hreg2(it,i)
    return p.vm(f'buffer_load_dwordx4 v[{r}:{r+3}], v{HV+i}, s[44:47], {so} offen sc1', S.ht.setdefault((it,i),Tok(f'h{it},{i}')))

def gemm2(p,S):
    opt=p.opt
    if opt.get('stop')=='Y':
        p.i('s_cmp_eq_u32 s93, 0\ns_cbranch_scc0 L_fin'); p.wvm0(); set_flag(p,'s58',44); p.wvm0(); return
    p.stamp('g')
    acc=lambda i,m: G2+20*i+4*m
    order=[(it,i) for it in range(10) for i in range(4)]+[(it,i) for i in range(4) for it in range(10,14)]
    groups=[]; first=set()
    for (it,i) in order:
        for m in range(5):
            q=Sub()
            if m==0: q.wvm(S.ht.setdefault((it,i),Tok(f'h{it},{i}')))
            a=acc(i,m); r=hreg2(it,i)
            q.i(f'v_mfma_f32_16x16x32_bf16 v[{a}:{a+3}], {w2reg(it,m)}, v[{r}:{r+3}], '+('0' if it==0 else f'v[{a}:{a+3}]'))
            groups.append(q.ops)
    side={}
    def at(g,fn): side.setdefault(g,[]).append(fn)
    for k in range(S.hnext,56):
        at(5*(k-NH2)+4,lambda p,k=k: h_load2(p,S,k//4,k%4))
    def yf(p):
        l=p.lab('Lyf'); p.i(f's_cmp_eq_u32 s93, 0\ns_cbranch_scc0 {l}'); p.push(); p.wvm(S.ty); set_flag(p,'s58',228); p.pop(); p.label(l)
    at(int(opt.get('gyf',40)),yf)
    def su(p):
        p.i(f'''
        s_mov_b32 s56, 0x199a
        s_lshl_b32 s61, s59, 2
        s_add_u32 s61, s61, s3
        s_mul_i32 s61, s61, {16*1280}
        s_mul_i32 s57, s60, 160
        s_add_u32 s61, s61, s57
        s_mul_i32 s65, s3, 40960''')
        for t in range(3):
            p.i(f'''
            v_add_u32 v94, {64*t}, v0
            v_mul_u32_u24 v95, s56, v94
            v_lshrrev_b32 v95, 16, v95
            v_mul_u32_u24 v96, {1280-160}, v95
            v_lshl_add_u32 v{88+t}, v94, 4, v96''')
        p.i(f'v_lshrrev_b32 v94, 5, v0\nv_lshlrev_b32 v94, 31, v94\nv_or_b32 v90, v90, v94')
        tt=None
        for t in range(3):
            p.i(f's_add_u32 m0, s65, {XST+1024*t}')
            tt=p.vm(f'buffer_load_dwordx4 v{88+t}, s[36:39], s61 offen lds')
        S.txs=tt
        p.i(f's_mul_i32 s57, s60, 160\nv_lshrrev_b32 v95, 4, v0\nv_lshl_add_u32 v95, v95, 3, s57')
        for m in range(5): S.tb2=p.vm(f'global_load_dwordx2 v[{96+2*m}:{97+2*m}], v95, s[26:27]'+(f' offset:{32*m}' if m else ''))
    at(60,su)
    def y0(p):
        p.i(f's_lshl_b32 s79, s60, 9\ns_add_u32 s79, s79, {YF}'); S.tf=flags2_load(p,228,'s79')
        p.i(f'''
        v_lshrrev_b32 v91, 3, v0
        v_and_b32 v92, 7, v0
        v_lshlrev_b32 v92, 4, v92
        v_mul_u32_u24 v95, 160, v91
        v_add_u32 v95, v95, v92
        v_lshl_add_u32 v91, v91, 12, v92
        v_add_u32 v92, 0x8000, v91
        v_add_u32 v93, 0x10000, v91
        v_or_b32 v93, v93, v94
        s_mul_i32 s56, s3, {20*160}
        s_add_u32 s56, s56, {YST}
        v_add_u32 v95, s56, v95
        s_mul_i32 s62, s60, 80
        s_mul_i32 s56, s3, 20
        s_add_u32 s62, s62, s56
        s_lshl_b32 s62, s62, 12
        s_lshl_b32 s56, s59, 7
        s_add_u32 s62, s62, s56
        s_add_u32 s62, s62, {YB}''')
    gy=int(opt.get('gy',128))
    at(gy,y0)
    YR=232
    def y1(p):
        p.poll(S.tf, lambda: flags2_load(p,228,'s79'), lambda: flags2_check(p,228,40))
        for t in range(3): S.tyl=p.vm(f'buffer_load_dwordx4 v[{HR+4*t}:{HR+4*t+3}], v{91+t}, s[44:47], s62 offen sc1')
    at(gy+32,y1)
    assert gy+32>=155
    def y2(p):
        p.wvm(S.tyl)
        p.ds(f'ds_write_b128 v95, v[{HR}:{HR+3}]'); p.ds(f'ds_write_b128 v95, v[{HR+4}:{HR+7}] offset:{8*160}')
        p.i('s_mov_b32 exec_lo, -1\ns_mov_b32 exec_hi, 0'); p.ds(f'ds_write_b128 v95, v[{HR+8}:{HR+11}] offset:{16*160}'); p.i('s_mov_b64 exec, -1')
        p.wds0(); p.i('s_barrier')
        p.i(f'''
        v_and_b32 v91, 15, v0
        v_mul_u32_u24 v91, 160, v91
        v_lshrrev_b32 v92, 4, v0
        v_lshl_add_u32 v91, v92, 3, v91
        v_add_u32 v91, s65, v91
        v_lshrrev_b32 v92, 2, v0
        v_mul_u32_u24 v92, 160, v92
        v_and_b32 v93, 3, v0
        v_lshl_add_u32 v92, v93, 3, v92
        s_lshl_b32 s56, s3, 5
        s_add_u32 s56, s56, {YST}
        v_add_u32 v92, s56, v92''')
        p.wvm(S.txs)
        for m in range(5):
            p.ds(f'ds_read_b64 v[{HR+2*m}:{HR+2*m+1}], v91 offset:{XST+32*m}')
            S.tyr=p.ds(f'ds_read_b64_tr_b16 v[{HR+10+2*m}:{HR+11+2*m}], v92 offset:{16*160*m}')
    at(gy+60,y2)
    assert gy+60>=5*36 and gy+60<200
    BS=HR+20
    def mkbase():
        q=Sub(); q.wds(S.tyr); q.wvm(S.tb2)
        for m in range(5):
            for d in range(2):
                o=BS+4*m+2*d; x=HR+2*m+d; y=HR+10+2*m+d; b=96+2*m+d
                q.i(f'''
                v_lshlrev_b32 v{o}, 16, v{x}
                v_and_b32 v{o+1}, 0xffff0000, v{x}
                v_lshlrev_b32 v106, 16, v{y}
                v_and_b32 v107, 0xffff0000, v{y}
                v_lshlrev_b32 v108, 16, v{b}
                v_and_b32 v109, 0xffff0000, v{b}
                v_add_f32 v{o}, v{o}, v106
                v_add_f32 v{o+1}, v{o+1}, v107
                v_add_f32 v{o}, v{o}, v108
                v_add_f32 v{o+1}, v{o+1}, v109''')
        return q.ops
    def pa(p):
        p.i(f'v_add_u32 v93, s65, v1')
        for i in range(3):
            p.i(f's_sub_u32 s56, s3, {1+i}\ns_and_b32 s56, s56, 3\ns_mul_i32 s56, s56, 40960\ns_add_u32 s56, s56, {5120*i}\nv_add_u32 v{228+i}, s56, v1')
    at(199,pa)
    for i in range(3):
        for m in range(5):
            at(200+20*(i+1)+4+2*m, lambda p,i=i,m=m: p.ds(f'ds_write_b128 v93, v[{acc(i,m)}:{acc(i,m)+3}] offset:{5120*i+1024*m}'))
    sec=None; k2=0
    for g,grp in enumerate(groups):
        for o in grp: p.add(o)
        for fn in side.get(g,[]): fn(p)
        if g>=gy+64:
            if sec is None: sec=mkbase()
            nb=0
            while k2<len(sec) and nb<2:
                nb+=sec[k2].kind=='i'; p.add(sec[k2]); k2+=1
        if g==273:
            p.wds0(); p.i('s_barrier')
            tr=[]
            for i in range(3):
                for m in range(5): tr.append(p.ds(f'ds_read_b128 v[{acc(i,m)}:{acc(i,m)+3}], v{228+i} offset:{1024*m}'))
    for o in sec[k2:]: p.add(o)
    p.stamp('h')
    for i in range(3):
        for m in range(5):
            p.wds(tr[5*i+m])
            for d in (0,2): p.i(f'v_pk_add_f32 v[{BS+4*m+d}:{BS+4*m+d+1}], v[{BS+4*m+d}:{BS+4*m+d+1}], v[{acc(i,m)+d}:{acc(i,m)+d+1}]')
    for m in range(5):
        for d in (0,2): p.i(f'v_pk_add_f32 v[{BS+4*m+d}:{BS+4*m+d+1}], v[{BS+4*m+d}:{BS+4*m+d+1}], v[{acc(3,m)+d}:{acc(3,m)+d+1}]')
    for m in range(5):
        p.i(f'v_cvt_pk_bf16_f32 v{8+2*m}, v{BS+4*m}, v{BS+4*m+1}\nv_cvt_pk_bf16_f32 v{9+2*m}, v{BS+4*m+2}, v{BS+4*m+3}')
        p.ds(f'ds_write_b64 v91, v[{8+2*m}:{9+2*m}] offset:{OST+32*m}')
    to=[p.ds(f'ds_read_b128 v[{20+4*t}:{23+4*t}], v93 offset:{OST+1024*t}') for t in range(3)]
    for t in range(3):
        p.wds(to[t]); p.vm(f'buffer_store_dwordx4 v[{20+4*t}:{23+4*t}], v{88+t}, s[48:51], s61 offen')
```

```python
from gen import *
C_G=2*math.sqrt(2/math.pi)*1.4426950408889634
XU={0:0,1:2,2:4,3:6,4:8,5:0,6:2,7:6,8:8,9:2}
BU={0:10,1:11,2:12,3:13,4:14,5:4,6:5,7:0,8:1,9:6,10:7,11:8,12:9,13:2,14:3,15:15,16:16,17:17,18:18,19:19}
INIT=['x0','b0','x1','b1','x2','b2','x3','b3','x4','b4']
AFTER={0:['x5'],1:['x6'],2:['b5','b6'],3:['x7'],4:['x8'],5:['b7','b8'],6:['x9'],7:['b9','b10'],8:['b11','b12'],9:['b13','b14','b15','b16','b17','b18','b19']}
STG=15*2048

class St: pass

def issue(p,S,e):
    k=int(e[1:])
    t=S.tok.setdefault(e,Tok(e))
    if e[0]=='x':
        p.i(f's_add_u32 m0, s65, {XU[k]*2048}')
        p.i(f's_add_u32 s57, s66, {128*k}')
        for q in range(4):
            p.vm(f'buffer_load_dwordx4 v{10+q}, s[36:39], s57 offen '+(f'offset:{1024*q} ' if q else '')+'lds', t if q==3 else None)
    else:
        h,j=divmod(k,10)
        p.i(f's_add_u32 m0, s65, {BU[k]*2048}')
        p.i(f's_add_u32 s57, s67, {j*64*3456+128*h}')
        p.vm('buffer_load_dwordx4 v14, s[40:43], s57 offen lds')
        p.vm('buffer_load_dwordx4 v15, s[40:43], s57 offen offset:1024 lds', t)
def drain_rd(p,S,j):
    p.wvm(S.tok[f'x{j}'])
    t=S.dtok.setdefault(j,Tok(f'd{j}'))
    for i in range(4):
        r=16*j+4*i
        p.ds(f'ds_read_b128 a[{r}:{r+3}], v{16+i} offset:{XU[j]*2048}', t if i==3 else None)
def drain_go(p,S,j):
    p.wds(S.dtok[j])
    for e in AFTER[j]: issue(p,S,e)

def events(S, upto):
    ev=[]
    for e in INIT[S.ninit:]: ev.append(lambda p,e=e: issue(p,S,e))
    for j in range(upto):
        ev.append(lambda p,j=j: drain_rd(p,S,j)); ev.append(lambda p,j=j: drain_go(p,S,j))
    return ev

def spread(p, main, evs, lo=0.0, hi=1.0):
    n=len(main); k=0
    posn=[int(n*(lo+(hi-lo)*(i+0.5)/len(evs))) for i in range(len(evs))] if evs else []
    masked=False
    for i,o in enumerate(main):
        while k<len(evs) and posn[k]<=i and not masked: evs[k](p); k+=1
        p.add(o)
        if 'exec' in o.text: masked = o.text!='s_mov_b64 exec, -1'
    while k<len(evs): evs[k](p); k+=1

def cmul(q, items):
    for n,(o,x,w) in enumerate(items):
        q.i(f'v_pk_mul_f32 v[{44+2*n}:{45+2*n}], v[{x}:{x+1}], v[{w}:{w+1}] op_sel_hi:[1,0]')
    for n,(o,x,w) in enumerate(items):
        q.i(f'v_pk_fma_f32 v[{o}:{o+1}], v[{x}:{x+1}], v[{w}:{w+1}], v[{44+2*n}:{45+2*n}] op_sel:[1,1,0] op_sel_hi:[0,1,1] neg_lo:[0,1,0]')

def kgen(S,p):
    q=Sub()
    B=[56,104]
    Z1,Z8,Z128,Z256,Z512,Z1024=0,2,4,6,8,10
    G=lambda k: 12+2*k
    p.stamp('f0',q)
    q.wvm(S.tpar)
    p.stamp('f1',q)
    q.i(f'v_lshlrev_b32 v38, 16, v38\nv_mul_f32 v38, {LOG2E:#x}, v38\nv_exp_f32 v38, v38\nv_lshlrev_b32 v39, 16, v39')
    bf16r(q,'v38','v38')
    for n,b in enumerate(B):
        un=(lambda d,s_: q.i(f'v_lshlrev_b32 v{d}, 16, v{s_}')) if n==0 else (lambda d,s_: q.i(f'v_and_b32 v{d}, 0xffff0000, v{s_}'))
        un(b+40,40); un(b+41,41); un(b+42,42); un(b+43,43)
    for b in B: q.i(f'v_mul_f32 v{b+40}, {LOG2E:#x}, v{b+40}\nv_mul_f32 v{b+41}, v{b+41}, v38')
    for b in B: q.i(f'v_exp_f32 v{b+40}, v{b+40}')
    for b in B: q.i(f'v_mul_f32 v{b+41}, {INV2PI:#x}, v{b+41}\nv_mul_f32 v{b+42}, v{b+42}, v38\nv_mul_f32 v{b+43}, v{b+43}, v38')
    for b in B: bf16r(q,f'v{b+40}',f'v{b+40}')
    for b in B: q.i(f'v_mul_f32 v{b+40}, v{b+40}, v38\nv_add_f32 v{b+G(0)}, v{b+42}, v{b+42}\nv_add_f32 v{b+G(0)+1}, v{b+43}, v{b+43}')
    for b in B: q.i(f'v_mul_f32 v{b+40}, {f2u(-1.4426950408889634):#x}, v{b+40}')
    for b in B: q.i(f'v_mul_f32 v{b+42}, 0x43000000, v{b+40}\nv_mul_f32 v{b+43}, 0x43000000, v{b+41}')
    for b in B: q.i(f'v_fract_f32 v{b+41}, v{b+41}\nv_fract_f32 v{b+43}, v{b+43}')
    for b in B: q.i(f'v_exp_f32 v{b+40}, v{b+40}\nv_exp_f32 v{b+42}, v{b+42}\nv_cos_f32 v{b+Z1}, v{b+41}\nv_sin_f32 v{b+Z1+1}, v{b+41}\nv_cos_f32 v{b+Z128}, v{b+43}\nv_sin_f32 v{b+Z128+1}, v{b+43}')
    for b in B:
        q.i(f'v_pk_mul_f32 v[{b+Z1}:{b+Z1+1}], v[{b+Z1}:{b+Z1+1}], v[{b+40}:{b+41}] op_sel_hi:[1,0]')
        q.i(f'v_pk_mul_f32 v[{b+Z128}:{b+Z128+1}], v[{b+Z128}:{b+Z128+1}], v[{b+42}:{b+43}] op_sel_hi:[1,0]')
    cmul(q,[(b+Z8,b+Z1,b+Z1) for b in B]+[(b+Z256,b+Z128,b+Z128) for b in B])
    cmul(q,[(b+Z8,b+Z8,b+Z8) for b in B]+[(b+Z512,b+Z256,b+Z256) for b in B])
    cmul(q,[(b+Z8,b+Z8,b+Z8) for b in B]+[(b+Z1024,b+Z512,b+Z512) for b in B])
    p.stamp('f2',q)
    wr=[0]
    def row(r, off, neg):
        o=152+2*(wr[0]%4); wr[0]+=1
        for n,b in enumerate(B): q.i(f'v_cvt_pk_bf16_f32 v{o+n}, v{b+off}, {"-" if neg else ""}v{b+off+1}')
        return q.ds(f'ds_write_b64 v8, v[{o}:{o+1}] offset:{r*544}')
    def frags(base):
        return [q.ds(f'ds_read_b128 v[{base+4*k}:{base+4*k+3}], v9 offset:{64*k}') for k in range(8)]
    E0,E1,Z16=36,38,40
    cmul(q,[(b+Z16,b+Z8,b+Z8) for b in B])
    q.i('v_mov_b32 v160, 0x3f80\nv_mov_b32 v161, 0x3f80'); q.ds('ds_write_b64 v8, v[160:161]')
    row(1,Z8,False); row(2,Z16,False)
    cmul(q,[(b+E1,b+Z8,b+Z16) for b in B]+[(b+E0,b+Z16,b+Z16) for b in B]); row(3,E1,False); row(4,E0,False)
    for j in range(5,15,2):
        cmul(q,[(b+E1,b+E1,b+Z16) for b in B]+[(b+E0,b+E0,b+Z16) for b in B]); row(j,E1,False); row(j+1,E0,False)
    cmul(q,[(b+E1,b+E1,b+Z16) for b in B]); row(15,E1,False)
    EF=164; GF=196
    p.stamp('k1',q)
    te=frags(EF)
    def tile(t):
        tg=frags(GF)
        l=[]
        for k in range(8):
            o=Sub()
            if t==0: o.wds(te[k])
            o.wds(tg[k])
            o.i(f'v_mfma_f32_16x16x32_bf16 v[{26+4*t}:{29+4*t}], v[{GF+4*k}:{GF+4*k+3}], v[{EF+4*k}:{EF+4*k+3}], '+('0' if k==0 else f'v[{26+4*t}:{29+4*t}]'))
            l.append(o.ops)
        return l
    T0,T1=E0,E1
    row(0,G(0),True)
    cmul(q,[(b+T0,b+G(0),b+Z1) for b in B]+[(b+G(4),b+G(0),b+Z128) for b in B]); row(1,T0,True); row(8,G(4),True)
    for k in range(1,4):
        cmul(q,[(b+G(k),b+T0,b+Z1) for b in B]+[(b+T1,b+T0,b+Z128) for b in B]); row(2*k,G(k),True); row(8+2*k-1,T1,True)
        cmul(q,[(b+T0,b+G(k),b+Z1) for b in B]+[(b+G(4+k),b+G(k),b+Z128) for b in B]); row(2*k+1,T0,True); row(8+2*k,G(4+k),True)
    cmul(q,[(b+T1,b+T0,b+Z128) for b in B]); row(15,T1,True)
    p.stamp('k2',q)
    m0=tile(0)
    def mf(l,k):
        for o in l[k]: q.add(o)
    keep={0:G(8),4:G(9),2:G(10),6:G(11)}
    for k in range(0,8,2):
        d0=keep.get(k,T0); d1=T1
        cmul(q,[(b+d0,b+G(k),b+Z256) for b in B]+[(b+d1,b+G(k+1),b+Z256) for b in B]); mf(m0,k); row(k,d0,True); mf(m0,k+1); row(k+1,d1,True)
    src=[(G(0),G(2)),(G(4),G(6)),(G(8),G(10)),(G(9),G(11))]; kp=[G(1),G(3),G(5),G(7)]
    for i in range(4):
        cmul(q,[(b+kp[i],b+src[i][0],b+Z512) for b in B]+[(b+T1,b+src[i][1],b+Z512) for b in B]); row(8+2*i,kp[i],True); row(9+2*i,T1,True)
    p.stamp('k3',q)
    m1=tile(1)
    s3=[G(0),G(4),G(8),G(9),G(1),G(3),G(5),G(7)]
    for i in range(0,8,2):
        d0=G(2) if i==0 else T0
        cmul(q,[(b+d0,b+s3[i],b+Z1024) for b in B]+[(b+T1,b+s3[i+1],b+Z1024) for b in B]); mf(m1,i); row(i,d0,True); mf(m1,i+1); row(i+1,T1,True)
    cmul(q,[(b+T0,b+G(2),b+Z1024) for b in B]); row(8,T0,True)
    m2=tile(2)
    for k in range(8): mf(m2,k)
    return q.ops

def pack(p,S):
    q=Sub()
    q.i(f'''
    v_bfe_u32 v40, v0, 2, 2
    v_bfe_u32 v41, v0, 4, 1
    v_lshl_add_u32 v40, v41, 2, v40
    v_lshlrev_b32 v41, 1, v40
    v_bfe_u32 v42, v0, 1, 1
    v_xor_b32 v41, v41, v42
    s_lshl_b32 s56, s3, 1
    v_xor_b32 v41, s56, v41
    v_lshrrev_b32 v42, 5, v0
    v_mul_u32_u24 v42, 81920, v42
    v_lshl_add_u32 v42, v40, 8, v42
    v_and_b32 v43, 1, v0
    v_lshl_add_u32 v42, v43, 3, v42
    v_add_u32 v42, {STG}, v42
    v_lshl_add_u32 v44, v41, 4, v42
    v_xor_b32 v41, 8, v41
    v_lshl_add_u32 v45, v41, 4, v42
    s_mul_i32 s58, s62, 5120
    s_add_u32 s58, s58, {W2P}
    s_or_b32 s58, s58, s63''')
    q.wvm(S.tw2); q.i('s_barrier')
    tp={}
    for t in range(10):
        b=64+4*t
        q.ds(f'ds_read_b64_tr_b16 v[{b}:{b+1}], v{44+(t&1)} offset:{(t>>1)*2048}')
        tp[t]=q.ds(f'ds_read_b64_tr_b16 v[{b+2}:{b+3}], v{44+(t&1)} offset:{(t>>1)*2048+40960}')
        if t>=2:
            pst(q,t-2,tp)
    pst(q,8,tp); S.tpk=pst(q,9,tp)
    q.i('s_barrier')
    return q.ops
def pst(q,t,tp):
    q.i(f'''
    s_add_u32 s56, s3, {4*t}
    s_mul_i32 s61, s56, 52
    s_lshr_b32 s61, s61, 8
    s_mul_i32 s61, s61, {276480-5120}
    s_lshl_b32 s56, s56, 10
    s_add_u32 s56, s56, s61
    s_add_u32 s56, s56, s58''')
    q.wds(tp[t])
    return q.vm(f'buffer_store_dwordx4 v[{64+4*t}:{67+4*t}], v1, s[44:47], s56 offen sc1')

def gelu_ops(q, acc, out, packed, tmp):
    if packed:
        for g in range(0,8,2):
            prs=[(acc+2*(g+u), tmp+2*u) for u in range(2)]
            for a,t in prs: q.i(f'v_pk_mul_f32 v[{t}:{t+1}], v[{a}:{a+1}], v[{a}:{a+1}]')
            for a,t in prs: q.i(f'v_pk_fma_f32 v[{t}:{t+1}], v[{t}:{t+1}], v[174:175], v[172:173] op_sel_hi:[1,0,0]')
            for a,t in prs: q.i(f'v_pk_mul_f32 v[{t}:{t+1}], v[{t}:{t+1}], v[{a}:{a+1}]')
            for a,t in prs: q.i(f'v_exp_f32 v{t}, v{t}\nv_exp_f32 v{t+1}, v{t+1}',cost=2)
            for a,t in prs: q.i(f'v_pk_fma_f32 v[{t}:{t+1}], v[{t}:{t+1}], v[176:177], v[176:177] op_sel_hi:[1,0,0]')
            for a,t in prs: q.i(f'v_rcp_f32 v{t}, v{t}\nv_rcp_f32 v{t+1}, v{t+1}',cost=2)
            for a,t in prs: q.i(f'v_pk_mul_f32 v[{t}:{t+1}], v[{t}:{t+1}], v[{a}:{a+1}]')
            for u,(a,t) in enumerate(prs): q.i(f'v_cvt_pk_bf16_f32 v{out+g+u}, v{t}, v{t+1}')
    else:
        for g in range(8):
            a=acc+2*g; t=tmp+2*(g&1)
            q.i(f'v_mul_f32 v{t}, v{a}, v{a}\nv_mul_f32 v{t+1}, v{a+1}, v{a+1}')
            q.i(f'v_fma_f32 v{t}, v{t}, v174, v172\nv_fma_f32 v{t+1}, v{t+1}, v174, v172')
            q.i(f'v_mul_f32 v{t}, v{t}, v{a}\nv_mul_f32 v{t+1}, v{t+1}, v{a+1}')
            q.i(f'v_exp_f32 v{t}, v{t}\nv_exp_f32 v{t+1}, v{t+1}',cost=2)
            q.i(f'v_fma_f32 v{t}, v{t}, v176, v176\nv_fma_f32 v{t+1}, v{t+1}, v176, v176')
            q.i(f'v_rcp_f32 v{t}, v{t}\nv_rcp_f32 v{t+1}, v{t+1}',cost=2)
            q.i(f'v_mul_f32 v{t}, v{t}, v{a}\nv_mul_f32 v{t+1}, v{t+1}, v{a+1}')
            q.i(f'v_cvt_pk_bf16_f32 v{out+g}, v{t}, v{t+1}')
def hstore(q,h,mt,out):
    so=f's{84+h}'
    q.vm(f'buffer_store_dwordx4 v[{out}:{out+3}], v3, s[44:47], {so} offen '+(f'offset:{1024*mt} ' if mt else '')+'sc1')
    return q.vm(f'buffer_store_dwordx4 v[{out+4}:{out+7}], v3, s[44:47], {so} offen offset:{1024*mt+512} sc1')

def ext_load(p,h):
    if h==0: p.vm('buffer_load_dwordx4 v[168:171], v4, s[44:47], s82 offen sc1')
    p.vm(f'buffer_load_dwordx4 v[{152+8*h}:{155+8*h}], v5, s[44:47], s{80+h} offen sc1')
    return p.vm(f'buffer_load_dwordx4 v[{156+8*h}:{159+8*h}], v5, s[44:47], s{80+h} offen offset:512 sc1')
def ext_check(p,h):
    p.i(f'v_and_b32 v6, v{155+8*h}, v{159+8*h}\nv_cmp_eq_u32 vcc, s83, v6\ns_or_b32 vcc_hi, vcc_hi, -1')
    if h==0: p.i('v_cmp_ne_u32 s[56:57], 0, v170\ns_and_b64 vcc, vcc, s[56:57]')
    p.i('s_cmp_eq_u64 vcc, -1')

def gpath(p):
    S=St(); S.tok={}; S.dtok={}; S.ninit=int(p.opt.get('ninit',4))
    opt=p.opt
    p.i(f'''
    s_sub_u32 s61, s35, 4
    s_and_b32 s56, s61, 3
    s_lshr_b32 s57, s34, 1
    s_lshl_b32 s57, s57, 2
    s_add_u32 s64, s56, s57
    s_lshr_b32 s56, s61, 2
    s_and_b32 s57, s34, 1
    s_mul_i32 s57, s57, 7
    s_add_u32 s58, s56, s57
    s_mul_i32 s65, s3, 40960
    s_lshl_b32 s56, s64, 2
    s_add_u32 s56, s56, s3
    s_mul_i32 s66, s56, {32*1280}
    s_lshl_b32 s82, s56, 9
    s_add_u32 s82, s82, {STAT}
    s_mul_i32 s84, s56, {2*55296}
    s_lshl_b32 s57, s58, 12
    s_add_u32 s84, s84, s57
    s_add_u32 s84, s84, {HP}
    s_add_u32 s85, s84, 2048
    s_lshl_b32 s80, s58, 11
    s_add_u32 s80, s80, {AEXT}
    s_add_u32 s81, s80, 1024
    s_cmp_eq_u32 s58, 13
    s_cselect_b32 s85, {OOB:#x}, s85
    s_cselect_b32 s81, s80, s81
    s_mov_b32 s83, {TAG:#x}
    s_lshr_b32 s56, s56, 1
    s_lshl_b32 s56, s56, 7
    s_lshl_b32 s57, s58, 3
    s_add_u32 s56, s56, s57
    s_and_b32 s57, s3, 1
    s_lshl_b32 s57, s57, 2
    s_add_u32 s56, s56, s57
    s_add_u32 s97, s56, {HF}
    s_mul_i32 s67, s3, {16*3456}
    s_lshl_b32 s57, s58, 8
    s_add_u32 s67, s67, s57
    s_mul_i32 s86, s34, 20
    s_add_u32 s86, s86, s61
    s_cmp_lt_u32 s61, 20
    s_cselect_b32 s93, 0, 1
    s_cbranch_scc0 L_Nload''')
    p.push()
    p.i('''
    s_lshl_b32 s56, s86, 2
    s_add_u32 s56, s56, s3
    s_lshl_b32 s57, s56, 8
    v_lshl_add_u32 v6, v0, 2, s57
    s_lshl_b32 s57, s56, 1
    v_mov_b32 v7, s57''')
    p.vm('global_load_ushort v38, v7, s[14:15]'); p.vm('global_load_ushort v39, v7, s[16:17]')
    p.vm('global_load_dword v40, v6, s[6:7]'); p.vm('global_load_dword v41, v6, s[8:9]'); p.vm('global_load_dword v42, v6, s[10:11]')
    S.tpar=p.vm('global_load_dword v43, v6, s[12:13]')
    p.i('s_branch L_Gc'); p.pop()
    p.label('L_Nload'); p.push()
    p.i(f'''
    s_lshl_b32 s62, s34, 3
    s_add_u32 s62, s62, s61
    s_sub_u32 s62, s62, 20
    s_lshl_b32 s86, s62, 4
    s_cmp_lt_u32 s62, 54
    s_cselect_b32 s63, 0, {OOB:#x}
    s_lshl_b32 s56, s62, 2
    s_add_u32 s56, s56, s3
    s_mul_i32 s56, s56, {8*1280}
    s_or_b32 s56, s56, s63
    v_lshrrev_b32 v6, 4, v0
    v_and_b32 v7, 15, v0
    v_lshlrev_b32 v8, 1, v6
    v_xor_b32 v7, v7, v8
    v_mul_u32_u24 v6, 1280, v6
    v_lshl_add_u32 v8, v7, 4, v6
    v_xor_b32 v7, 8, v7
    v_lshl_add_u32 v9, v7, 4, v6
    v_add_u32 v9, {4*1280-1024}, v9''')
    for cb in range(5):
        p.i(f's_add_u32 m0, s65, {STG+cb*2048}\ns_add_u32 s57, s56, {cb*256}')
        p.vm('buffer_load_dwordx4 v8, s[52:55], s57 offen lds')
        S.tw2=p.vm('buffer_load_dwordx4 v9, s[52:55], s57 offen offset:1024 lds')
    p.pop(); p.label('L_Gc')
    p.i(f'''
    v_lshrrev_b32 v6, 3, v0
    v_and_b32 v7, 7, v0
    v_lshrrev_b32 v8, 4, v0
    v_xor_b32 v8, v8, v7
    v_mul_u32_u24 v9, 1280, v6
    v_lshl_add_u32 v10, v8, 4, v9
    v_xor_b32 v8, 4, v8
    v_lshl_add_u32 v11, v8, 4, v9
    v_add_u32 v11, {10240-1024}, v11
    v_add_u32 v12, {2*(10240-1024)}, v10
    v_add_u32 v13, {2*(10240-1024)}, v11
    v_bfe_u32 v8, v0, 4, 1
    v_lshlrev_b32 v8, 2, v8
    v_xor_b32 v8, v8, v7
    v_mul_u32_u24 v9, 3456, v6
    v_lshl_add_u32 v14, v8, 4, v9
    v_add_u32 v15, {8*3456-1024}, v14''')
    for e in INIT[:S.ninit]: issue(p,S,e)
    tdbg=dbg_load(p,25)
    p.i(f'''
    v_and_b32 v6, 31, v0
    v_lshrrev_b32 v7, 5, v0
    v_bfe_u32 v8, v0, 1, 3
    v_xor_b32 v8, v8, v7
    v_lshlrev_b32 v9, 7, v6
    v_add_u32 v9, s65, v9''')
    for i in range(4): p.i(f'v_xor_b32 v20, {2*i}, v8\nv_lshl_add_u32 v{16+i}, v20, 4, v9')
    p.i(f'''
    v_lshlrev_b32 v4, 4, v6
    v_lshl_add_u32 v5, v7, 31, v4
    v_bfe_u32 v8, v0, 4, 1
    v_mul_u32_u24 v3, 55296, v8
    v_lshl_add_u32 v3, v7, 8, v3
    v_and_b32 v6, 15, v0
    v_lshl_add_u32 v3, v6, 4, v3
    s_add_u32 s56, s65, {STG}
    v_lshl_add_u32 v8, v0, 3, s56
    v_mul_u32_u24 v9, 544, v6
    v_lshrrev_b32 v6, 4, v0
    v_lshl_add_u32 v9, v6, 4, v9
    v_add_u32 v9, s56, v9
    s_cmp_eq_u32 s93, 0
    s_cbranch_scc0 L_Npack''')
    ND=int(opt.get('nd',5))
    p.push(); spread(p,kgen(S,p),events(S,ND),0.02,0.98)
    p.stamp('k4')
    dbg_poll(p,25,tdbg)
    p.i('s_branch L_Gm'); p.pop()
    p.label('L_Npack'); p.push()
    ev=events(S,ND); n0=len(INIT)-S.ninit
    for e in ev[:n0]: e(p)
    spread(p,pack(p,S),ev[n0:n0+4],0.3,1.0)
    for e in ev[n0+4:]: e(p)
    dbg_poll(p,25,tdbg)
    p.wvm(S.tpk); p.i(f's_lshl_b32 s56, s3, 2\ns_add_u32 s56, s56, s86'); set_flag(p,'s56',6)
    p.pop(); p.label('L_Gm')
    p.stamp('a')
    if opt.get('stop')=='K':
        p.i(f's_lshl_b32 s56, s86, 2\ns_add_u32 s56, s56, s3\ns_lshl_b32 s56, s56, 12\ns_add_u32 s56, s56, {YB}\ns_cmp_eq_u32 s93, 0\ns_cselect_b32 s56, s56, {OOB:#x}')
        for t in range(3): p.vm(f'buffer_store_dwordx4 v[{26+4*t}:{29+4*t}], v1, s[44:47], s56 offen offset:{1024*t}')
        p.wvm0(); p.i('s_branch L_fin'); p.label('L_noconv'); return
    p.i(f'''
    v_bfe_u32 v6, v0, 2, 2
    v_lshrrev_b32 v7, 5, v0
    v_lshl_add_u32 v7, v7, 3, v6
    v_lshlrev_b32 v7, 7, v7
    v_bfe_u32 v20, v0, 4, 1
    v_lshl_add_u32 v7, v20, 5, v7
    v_and_b32 v20, 3, v0
    v_lshl_add_u32 v7, v20, 3, v7
    v_bfe_u32 v6, v0, 3, 1
    v_lshl_add_u32 v56, v6, 6, v7
    v_xor_b32 v57, 64, v56''')
    for i in range(1,4): p.i(f'v_add_u32 v{56+2*i}, {40960*i}, v56\nv_add_u32 v{57+2*i}, {40960*i}, v57')
    w2p_setup(p)
    gemm1(p,S,ND)
    if opt.get('stop')=='H':
        p.wvm0(); p.i('s_branch L_fin'); p.label('L_noconv'); return
    import gen_c
    gen_c.conv(p,S); gen_c.gemm2(p,S)

def gemm1(p,S,ND):
    opt=p.opt
    ACC=lambda h,mt: 64+32*h+16*mt
    FB=lambda n,mt: 128+8*(n%3)+4*mt
    ft={}
    def rd(q,n,mt):
        h,r=divmod(n,40); j,i=divmod(r,4); u=BU[10*h+j]*2048; b=FB(n,mt)
        q.ds(f'ds_read_b64_tr_b16 v[{b}:{b+1}], v{56+2*i+mt} offset:{u}')
        ft[n,mt]=q.ds(f'ds_read_b64_tr_b16 v[{b+2}:{b+3}], v{56+2*i+mt} offset:{u+512}')
    SYNC={0:'b4',5:'b6',7:'b8',9:'b10',11:'b14',15:'b19'}
    def sync(q,g):
        q.wvm(S.tok.setdefault(SYNC[g],Tok(SYNC[g]))); q.i('s_barrier')
    sync(p,0)
    for n in (0,1):
        for mt in (0,1): rd(p,n,mt)
    groups=[]
    for n in range(80):
        h,r=divmod(n,40); j,i=divmod(r,4)
        for mt in (0,1):
            q=Sub()
            if mt==0:
                if h==0 and i==0 and j>=ND: q.wds(S.dtok.setdefault(j,Tok(f'd{j}')))
                q.wds(ft[n,0])
            else: q.wds(ft[n,1])
            a=ACC(h,mt); x=16*j+4*i
            q.i(f'v_mfma_f32_32x32x16_bf16 v[{a}:{a+15}], v[{FB(n,mt)}:{FB(n,mt)+3}], a[{x}:{x+3}], '+('0' if r==0 else f'v[{a}:{a+15}]'))
            if n+2<80:
                if mt==0 and (n+2)%4==0 and (n+2)//4 in SYNC: sync(q,(n+2)//4)
                rd(q,n+2,mt)
            groups.append(q.ops)
    side={}
    def at(g,fn): side.setdefault(g,[]).append(fn)
    for j in range(ND,10):
        g=max(0,8*j-22)
        at(g,lambda p,j=j: drain_rd(p,S,j)); at(g+3,lambda p,j=j: drain_go(p,S,j))
    def e0(p): S.te0=ext_load(p,0)
    at(62,e0)
    def c0(p):
        p.poll(S.te0, lambda: ext_load(p,0), lambda: ext_check(p,0))
        p.i(f'''
        v_mul_f32 v172, {f2u(-C_G):#x}, v171
        v_mul_f32 v174, v171, v171
        v_lshlrev_b32 v176, 16, v170
        v_and_b32 v177, 0xffff0000, v170
        v_mul_f32 v174, v174, v172
        v_add_f32 v176, v176, v177
        v_mul_f32 v174, {f2u(0.044715):#x}, v174
        v_mov_b32 v171, 0''')
    at(76,c0)
    def x0(p):
        for mt in (0,1): p.i(f'v_mfma_f32_32x32x16_bf16 v[{ACC(0,mt)}:{ACC(0,mt)+15}], v[{152+4*mt}:{155+4*mt}], v[168:171], v[{ACC(0,mt)}:{ACC(0,mt)+15}]')
        p.stamp('b')
    at(79,x0)
    def f0(p): S.tf=flags4_load(p,216,W2F)
    at(70,f0)
    def f1(p): p.poll(S.tf, lambda: flags4_load(p,216,W2F), lambda: flags4_check(p,216))
    at(80,f1)
    def e1(p): S.te1=ext_load(p,1)
    at(110,e1)
    def c1(p):
        p.poll(S.te1, lambda: ext_load(p,1), lambda: ext_check(p,1))
        for mt in (0,1): p.i(f'v_mfma_f32_32x32x16_bf16 v[{ACC(1,mt)}:{ACC(1,mt)+15}], v[{160+4*mt}:{163+4*mt}], v[168:171], v[{ACC(1,mt)}:{ACC(1,mt)+15}]')
    at(130,c1)
    def g0(p): p.i(f's_mov_b32 s79, {XNF}'); S.tx=flags2_load(p,216,'s79')
    at(136,g0)
    k=0
    for g in range(82,160,2):
        n=g//2
        if k<24 or (k-24)<=(n-1-40):
            at(g,lambda p,k=k: w2p_load(p,k//5,k%5)); k+=1
    S.w2next=k
    q=Sub()
    for mt in (0,1):
        gelu_ops(q,ACC(0,mt),200+8*mt,False,180); hstore(q,0,mt,200+8*mt)
    sec=q.ops; k2=0
    bud=float(opt.get('gbud',3.2)); credit=0
    for g,grp in enumerate(groups):
        for o in grp: p.add(o)
        for fn in side.get(g,[]): fn(p)
        if g>=84:
            credit+=bud
            while k2<len(sec) and credit>=sec[k2].cost:
                credit-=sec[k2].cost; p.add(sec[k2]); k2+=1
    p.stamp('c')
    p.i('s_barrier')
    for o in sec[k2:]: p.add(o)
    p.i('s_cmp_eq_u32 s93, 0\ns_cbranch_scc0 L_nou'); p.push()
    p.poll(S.tx, lambda: flags2_load(p,216,'s79'), lambda: flags2_check(p,216))
    p.i(f's_lshl_b32 s56, s86, 14\ns_lshl_b32 s57, s3, 12\ns_add_u32 s56, s56, s57\ns_add_u32 s56, s56, {XNT}')
    for m in range(4): S.tu=p.vm(f'buffer_load_dwordx4 v[{216+4*m}:{219+4*m}], v1, s[44:47], s56 offen '+(f'offset:{1024*m} ' if m else '')+'sc1')
    p.pop(); p.label('L_nou')
    q=Sub()
    for mt in (0,1):
        gelu_ops(q,ACC(1,mt),200+8*mt,True,180); th=hstore(q,1,mt,200+8*mt)
    nr=int(opt.get('nw2g',10))
    rest=[lambda p,k=k: w2p_load(p,k//5,k%5) for k in range(S.w2next,S.w2next+nr)]
    S.w2next+=nr
    spread(p,q.ops,rest,0.0,0.9)
    S.th=th
    p.stamp('d')
    if opt.get('stop')=='H':
        p.wvm(th); set_flag(p,'s97',6)
```

```python
import sys, struct, math
from asmgen import *

NAME='parallel_sum__ssm_conv_s4d__mixer_channel_mlp__prompt_kernel'
W2F=0; XNF=1024; HF=2048; YF=6144; STAT=32768; AEXT=65536; XNT=0x20000; YB=0x2A0000; W2P=0x520000; HP=0x740000; WSZ=0xE00000
STAMP=0xE00000
OOB=0x80000000
TAG=0x3F803F80
def f2u(x): return struct.unpack('<I',struct.pack('<f',x))[0]
LOG2E=f2u(1.4426950408889634); INV2PI=f2u(1/(2*math.pi)); EPS=f2u(1e-5)
SPIN=200000

class G(Prog):
    def __init__(s, opt):
        super().__init__(); s.opt=opt; s.nl=0; s.nstamp=0
    def lab(s,p='L'):
        s.nl+=1; return f'{p}_{s.nl}'
    def stamp(s, name, q=None):
        st=s.opt.get('stamps')
        if not st: return
        l=str(st).split(',')
        if name not in l: return
        idx=l.index(name); assert idx<9
        q=q or s
        q.i(f's_memtime s[98:99]'); q.wds0(); q.i(f's_mov_b32 s{70+idx}, s98')
    def poll(s, tok, reload_fn, check_fn):
        ok=s.lab('Lok'); lp=s.lab('Lsp')
        s.wvm(tok); check_fn(); s.i(f's_cbranch_scc1 {ok}')
        s.push()
        s.i(f's_mov_b32 s96, 0'); s.label(lp)
        s.i('s_sleep 2'); reload_fn(); s.wvm0(); check_fn()
        s.i(f's_cbranch_scc1 {ok}')
        s.i(f's_add_u32 s96, s96, 1\ns_cmp_lt_u32 s96, {SPIN}\ns_cbranch_scc1 {lp}')
        s.pop(); s.label(ok)

def bf16r(p, dst, src):
    p.i(f'v_cvt_pk_bf16_f32 {dst}, {src}, {src}\nv_and_b32 {dst}, 0xffff0000, {dst}')

def xreduce(p, regs_, tmp, steps):
    for st in steps:
        for k,r in enumerate(regs_):
            t=tmp[k%len(tmp)]
            if st==8: p.i(f'v_add_f32_dpp v{r}, v{r}, v{r} row_ror:8 row_mask:0xf bank_mask:0xf')
            else:
                p.i(f'v_mov_b32 v{t}, v{r}'); p.i(f'v_permlane{st}_swap_b32 v{r}, v{t}'); p.i(f'v_add_f32 v{r}, v{r}, v{t}')

def prologue(p):
    p.i(f'''
    s_load_dwordx16 s[4:19], s[0:1], 0
    s_load_dwordx8 s[20:27], s[0:1], 64
    s_load_dwordx4 s[28:31], s[0:1], 96
    s_load_dwordx2 s[32:33], s[0:1], 112
    s_cmp_lt_u32 s2, 256
    s_cbranch_scc1 L_go
    s_endpgm''')
    p.label('L_go')
    if p.opt.get('stamps'): p.i('s_memrealtime s[94:95]\ns_memtime s[68:69]')
    p.i(f'''
    s_getpc_b64 s[56:57]
    v_lshrrev_b32 v1, 6, v0
    v_and_b32 v0, 63, v0
    s_lshr_b32 s35, s2, 3
    v_readfirstlane_b32 s3, v1
    s_and_b32 s34, s2, 7
    s_and_b32 s58, s35, 7
    s_mul_i32 s58, s58, 40
    s_cmp_lg_u32 s3, 3
    s_cbranch_scc1 L_nopf''')
    p.push()
    p.i(f'''
    v_min_u32 v2, 39, v0
    v_add_u32 v2, s58, v2
    v_lshlrev_b32 v2, 7, v2
    v_min_u32 v2, L_codeend-L_go-128, v2
    v_mov_b32 v3, s57
    v_add_co_u32 v2, vcc, s56, v2
    v_addc_co_u32 v3, vcc, 0, v3, vcc''')
    p.vm('global_load_dword v255, v[2:3], off')
    p.pop(); p.label('L_nopf')
    p.wds0()
    def srd(n, lo, size):
        p.i(f's_mov_b32 s{n}, s{lo}\ns_mov_b32 s{n+1}, s{lo+1}\ns_mov_b32 s{n+2}, {size}\ns_mov_b32 s{n+3}, 0x20000')
    srd(36,4,2048*1280); srd(40,20,640*3456); srd(44,32,WSZ+(0x100000 if p.opt.get('stamps') else 0)); srd(48,28,2048*1280); srd(52,24,1728*1280)
    p.i(f'''
    s_and_b32 s59, s35, 3
    s_lshl_b32 s58, s34, 2
    s_add_u32 s59, s59, s58
    s_lshr_b32 s60, s35, 2
    v_lshlrev_b32 v1, 4, v0
    s_cmp_lt_u32 s35, 4
    s_cbranch_scc0 L_G''')

def check_all(p, v, n, val=1):
    p.i(f'v_cmp_eq_u32 vcc, {val}, v{v}')
    if n<64:
        m=((1<<64)-1)^((1<<n)-1)
        p.i(f's_or_b32 vcc_lo, vcc_lo, {m&0xffffffff:#x}' if m&0xffffffff else 's_nop 0')
        p.i(f's_or_b32 vcc_hi, vcc_hi, {m>>32:#x}')
    p.i('s_cmp_eq_u64 vcc, -1')

def dbg_load(p, v):
    p.i(f'v_and_b32 v{v}, 31, v0\nv_lshlrev_b32 v{v}, 2, v{v}'); return p.vm(f'global_load_dword v{v}, v{v}, s[30:31] sc1')
def dbg_poll(p, v, tok):
    p.poll(tok, lambda: dbg_load(p,v), lambda: check_all(p,v,64,1))
def flags2_load(p, v, soff):
    p.i(f'v_lshlrev_b32 v{v}, 3, v0'); return p.vm(f'buffer_load_dwordx2 v[{v}:{v+1}], v{v}, s[44:47], {soff} offen sc1')
def flags2_check(p, v, n=64):
    p.i(f'v_and_b32 v{v}, v{v}, v{v+1}'); check_all(p,v,n)
def flags4_load(p, v, soff):
    return p.vm(f'buffer_load_dwordx4 v[{v}:{v+3}], v1, s[44:47], {soff} offen sc1')
def flags4_check(p, v):
    p.i(f'v_and_b32 v{v}, v{v}, v{v+1}\nv_and_b32 v{v+2}, v{v+2}, v{v+3}\nv_and_b32 v{v}, v{v}, v{v+2}'); check_all(p,v,64)
def flags1_load(p, v, soff):
    p.i(f'v_lshlrev_b32 v{v}, 2, v0'); return p.vm(f'buffer_load_dword v{v}, v{v}, s[44:47], {soff} offen sc1')
def set_flag(p, soff, v):
    p.i(f'v_mov_b32 v{v}, 1\nv_mov_b32 v{v+1}, 0\ns_mov_b64 exec, 1')
    p.vm(f'buffer_store_dword v{v}, v{v+1}, s[44:47], {soff} offen sc1')
    p.i('s_mov_b64 exec, -1')

def fpath(p):
    p.push()
    p.i(f'''
    s_lshl_b32 s61, s34, 2
    s_add_u32 s61, s61, s35
    s_and_b32 s56, s34, 1
    s_lshr_b32 s57, s34, 1
    s_lshl_b32 s57, s57, 2
    s_add_u32 s57, s57, s35
    s_mul_i32 s62, s56, 14
    s_add_u32 s62, s62, s57
    s_sub_u32 s56, 14, s56
    s_cmp_lt_u32 s57, s56
    s_cselect_b32 s62, s62, 0
    s_cselect_b32 s63, 0, {OOB:#x}
    s_lshl_b32 s56, s61, 10
    s_add_u32 s57, s56, {STAT}
    s_cmp_eq_u32 s3, 1
    s_cselect_b32 s56, s57, s56
    s_lshl_b32 s57, s62, 10
    s_add_u32 s57, s57, {AEXT}
    s_or_b32 s57, s57, s63
    s_cmp_eq_u32 s3, 2
    s_cselect_b32 s56, s57, s56
    s_cmp_eq_u32 s3, 3
    s_cselect_b32 s56, {OOB:#x}, s56
    v_mov_b32 v4, 0
    v_mov_b32 v5, 0
    v_mov_b32 v6, 0
    v_mov_b32 v7, 0''')
    tz=p.vm('buffer_store_dwordx4 v[4:7], v1, s[44:47], s56 offen sc1')
    p.i(f'''
    s_and_b32 s64, s3, 1
    s_lshl_b32 s64, s64, 2
    v_lshrrev_b32 v2, 4, v0
    v_and_b32 v3, 15, v0
    v_xor_b32 v8, v3, v2
    v_xor_b32 v8, s64, v8
    v_mul_u32_u24 v9, 1280, v2''')
    for rg in range(4):
        p.i(f'v_xor_b32 v14, {4*rg}, v8\nv_lshl_add_u32 v14, v14, 4, v9\nv_add_u32 v{10+rg}, {4*rg*1280}, v14')
    p.i(f'''
    s_lshl_b32 s56, s61, 2
    s_add_u32 s56, s56, s3
    s_mul_i32 s56, s56, {16*1280}
    s_mul_i32 s65, s3, 20480''')
    tx={}
    for cb in range(5):
        for rg in range(4):
            p.i(f's_add_u32 m0, s65, {cb*4096+rg*1024}')
            if rg==0: p.i(f's_add_u32 s57, s56, {cb*256}')
            tx[cb,rg]=p.vm(f'buffer_load_dwordx4 v{10+rg}, s[36:39], s57 offen lds')
        if cb==1:
            p.wvm(tz); p.i('s_barrier\ns_cmp_lg_u32 s3, 0\ns_cbranch_scc1 L_Fnoat')
            p.push(); p.i('s_lshl_b32 s57, s61, 2\nv_mov_b32 v4, s57\nv_mov_b32 v5, 1\ns_mov_b64 exec, 1'); p.vm('global_store_dword v4, v5, s[30:31] sc1'); p.i('s_mov_b64 exec, -1'); p.pop()
            p.label('L_Fnoat')
    p.i(f'''
    v_lshrrev_b32 v14, 3, v0
    v_and_b32 v15, 7, v0
    v_mul_u32_u24 v14, 3456, v14
    v_lshl_add_u32 v14, v15, 4, v14
    s_mul_i32 s56, s3, {160*3456}
    s_lshl_b32 s57, s62, 7
    s_add_u32 s56, s56, s57
    s_or_b32 s56, s56, s63''')
    tw=[]
    for m in range(20):
        p.i(f's_add_u32 s57, s56, {m*8*3456}')
        tw.append(p.vm(f'buffer_load_dwordx4 v[{64+4*m}:{67+4*m}], v14, s[40:43], s57 offen'))
    p.i(f's_lshl_b32 s56, s62, 7\nv_lshl_add_u32 v15, v0, 1, s56')
    tb1=p.vm('global_load_ushort v15, v15, s[22:23]')
    p.stamp('f0')
    p.i(f'''
    v_xor_b32 v8, s64, v3
    v_xor_b32 v8, v8, v2
    v_lshlrev_b32 v9, 8, v3
    v_add_u32 v9, s65, v9''')
    for k in range(4):
        p.i(f'v_xor_b32 v14, {4*k}, v8\nv_lshl_add_u32 v{16+k}, v14, 4, v9')
    p.i(f's_mov_b32 s66, {TAG:#x}')
    for k in range(8): p.i(f'v_mov_b32 v{20+k}, 0')
    rd={}
    def rdx(cb):
        p.wvm(tx[cb,3])
        for k in range(4): rd[cb,k]=p.ds(f'ds_read_b128 v[{160+16*(cb%2)+4*k}:{163+16*(cb%2)+4*k}], v{16+k} offset:{cb*4096}')
    rdx(0)
    p.stamp('f1')
    for cb in range(5):
        if cb<4: rdx(cb+1)
        for k in range(4):
            p.wds(rd[cb,k])
            for e in range(4):
                r=160+16*(cb%2)+4*k+e
                p.i(f'v_dot2_f32_bf16 v{20+e}, v{r}, s66, v{20+e}\nv_dot2_f32_bf16 v{24+e}, v{r}, v{r}, v{24+e}')
    p.i('''
    v_add_f32 v20, v20, v21
    v_add_f32 v22, v22, v23
    v_add_f32 v24, v24, v25
    v_add_f32 v26, v26, v27
    v_add_f32 v20, v20, v22
    v_add_f32 v21, v24, v26''')
    p.stamp('f2')
    xreduce(p,[20,21],[22,23],[16,32])
    p.i(f'''
    v_mul_f32 v20, {f2u(1/640):#x}, v20
    v_mul_f32 v21, {f2u(1/640):#x}, v21
    v_fma_f32 v21, -v20, v20, v21
    v_max_f32 v21, 0, v21''')
    bf16r(p,'v22','v20')
    bf16r(p,'v23','v21')
    p.i(f'v_add_f32 v23, {EPS:#x}, v23'); bf16r(p,'v23','v23')
    p.i('v_sqrt_f32 v23, v23'); bf16r(p,'v23','v23')
    p.i('''
    v_rcp_f32 v24, v23
    v_sub_f32 v25, v20, v22
    v_mul_f32 v25, v25, v24
    v_mul_f32 v26, v21, v24
    v_mul_f32 v26, v26, v24
    v_mul_f32 v27, v22, v24
    v_sub_f32 v27, 0, v27''')
    bf16r(p,'v25','v25'); bf16r(p,'v26','v26')
    p.i(f'v_add_f32 v26, {EPS:#x}, v26'); bf16r(p,'v26','v26')
    p.i('v_sqrt_f32 v26, v26'); bf16r(p,'v26','v26')
    p.i('''
    v_mul_f32 v26, v26, v23
    v_fma_f32 v25, v25, v23, v22
    v_rcp_f32 v31, v26''')
    bf16r(p,'v22','v25'); p.i('v_sub_f32 v25, v25, v22\nv_cvt_pk_bf16_f32 v28, -v22, -v25\nv_mov_b32 v29, v28')
    bf16r(p,'v22','v26'); p.i('v_sub_f32 v26, v26, v22\nv_cvt_pk_bf16_f32 v30, v22, v26')
    T1=81920; T2=81920+1024
    p.i(f'''
    s_lshl_b32 s56, s61, 2
    s_add_u32 s56, s56, s3
    s_lshl_b32 s56, s56, 8
    s_add_u32 s56, s56, {STAT}
    s_lshl_b32 s57, s3, 6
    v_lshl_add_u32 v22, v0, 2, s57
    s_mov_b64 exec, 0xffff''')
    p.vm('buffer_store_dwordx4 v[28:31], v1, s[44:47], s56 offen sc1')
    p.i(f'v_add_u32 v22, {T1}, v22')
    p.ds('ds_write_b32 v22, v24'); p.ds('ds_write_b32 v22, v27 offset:256')
    p.i('s_mov_b64 exec, -1')
    p.stamp('a')
    p.i('s_mov_b32 s66, 0x3f80\ns_mov_b32 s67, 0x3f800000')
    for m in range(20):
        if m%2==0: p.wvm(tw[min(m+1,19)])
        for e in range(4):
            r=64+4*m+e
            c0='0' if m==0 else f'v{32+2*e}'; c1='0' if m==0 else f'v{33+2*e}'
            p.i(f'v_dot2_f32_bf16 v{32+2*e}, v{r}, s66, {c0}\nv_dot2_f32_bf16 v{33+2*e}, v{r}, s67, {c1}')
    xreduce(p,list(range(32,40)),[40,41,42,43],[8,16,32])
    p.i(f'''
    s_lshl_b32 s57, s3, 8
    s_add_u32 s57, s57, {T2}
    v_lshl_add_u32 v22, v0, 5, s57
    s_mov_b64 exec, 0xff''')
    p.ds('ds_write_b128 v22, v[32:35]'); p.ds('ds_write_b128 v22, v[36:39] offset:16')
    p.i('s_mov_b64 exec, -1'); p.wds0(); p.i('s_barrier')
    p.i(f'''
    v_lshlrev_b32 v22, 2, v0
    v_add_u32 v22, {T2}, v22
    v_bfe_u32 v23, v0, 2, 3
    v_lshlrev_b32 v23, 5, v23
    v_add_u32 v23, {T1}, v23''')
    tt=[p.ds(f'ds_read_b32 v{32+k}, v22 offset:{256*k}') for k in range(4)]
    for k in range(2): p.ds(f'ds_read_b128 v[{44+4*k}:{47+4*k}], v23 offset:{16*k}')
    for k in range(2): tl=p.ds(f'ds_read_b128 v[{52+4*k}:{55+4*k}], v23 offset:{256+16*k}')
    p.wds(tt[3])
    p.i('v_add_f32 v32, v32, v33\nv_add_f32 v34, v34, v35\nv_add_f32 v32, v32, v34')
    p.i('v_cvt_pk_bf16_f32 v36, v32, v32\nv_and_b32 v33, 0xffff0000, v36\nv_sub_f32 v33, v32, v33\nv_cvt_pk_bf16_f32 v37, v33, v33')
    p.wvm(tb1)
    p.i(f'''
    v_lshl_add_u32 v38, v15, 16, v15
    v_mov_b32 v39, {TAG:#x}
    s_lshl_b32 s56, s62, 10
    s_add_u32 s56, s56, {AEXT}
    s_or_b32 s56, s56, s63
    s_cmp_eq_u32 s3, 0
    s_cselect_b32 s56, s56, {OOB:#x}''')
    p.vm('buffer_store_dwordx4 v[36:39], v1, s[44:47], s56 offen sc1')
    tdbg=dbg_load(p,60)
    p.stamp('b')
    p.i(f'''
    v_bfe_u32 v8, v0, 2, 2
    v_and_b32 v9, 1, v0
    v_lshl_add_u32 v8, v9, 3, v8
    v_bfe_u32 v9, v0, 4, 1
    v_bfe_u32 v22, v0, 1, 1
    v_lshl_add_u32 v9, v9, 1, v22
    v_lshlrev_b32 v14, 2, v22
    v_xor_b32 v14, v14, v8
    v_xor_b32 v14, s3, v14
    v_mul_u32_u24 v9, 20480, v9
    v_lshl_add_u32 v9, v8, 8, v9
    v_lshrrev_b32 v22, 5, v0
    v_lshl_add_u32 v9, v22, 3, v9
    v_and_b32 v23, 31, v0
    v_lshlrev_b32 v23, 4, v23
    v_lshl_add_u32 v23, v22, 14, v23
    s_lshl_b32 s56, s3, 15
    s_lshl_b32 s57, s61, 9
    s_add_u32 s56, s56, s57
    s_add_u32 s56, s56, {XNT}''')
    for k in range(4): p.i(f'v_xor_b32 v22, {4*k}, v14\nv_lshl_add_u32 v{16+k}, v22, 4, v9')
    tn={}
    def nrd(t):
        b=160+4*(t%4)
        p.ds(f'ds_read_b64_tr_b16 v[{b}:{b+1}], v{16+(t&3)} offset:{(t>>2)*4096}')
        tn[t]=p.ds(f'ds_read_b64_tr_b16 v[{b+2}:{b+3}], v{16+((t&3)^1)} offset:{(t>>2)*4096+1024}')
    for t in range(3): nrd(t)
    p.wds(tl)
    for t in range(20):
        if t+3<20: nrd(t+3)
        b=160+4*(t%4); o=184+4*(t%2)
        p.wds(tn[t])
        for k in range(4):
            p.i(f'v_lshlrev_b32 v{176+2*k}, 16, v{b+k}\nv_and_b32 v{177+2*k}, 0xffff0000, v{b+k}')
        for k in range(4):
            p.i(f'v_pk_fma_f32 v[{176+2*k}:{177+2*k}], v[{176+2*k}:{177+2*k}], v[{44+2*k}:{45+2*k}], v[{52+2*k}:{53+2*k}]')
        for k in range(4): p.i(f'v_cvt_pk_bf16_f32 v{o+k}, v{176+2*k}, v{177+2*k}')
        p.i(f's_add_u32 s57, s56, {t*8*16384}')
        txn=p.vm(f'buffer_store_dwordx4 v[{o}:{o+3}], v23, s[44:47], s57 offen sc1')
    dbg_poll(p,60,tdbg)
    p.i(f's_lshl_b32 s58, s61, 2\ns_add_u32 s58, s58, s3\ns_lshl_b32 s58, s58, 2\ns_add_u32 s58, s58, {XNF}')
    p.wvm(txn); set_flag(p,'s58',60)
    p.stamp('d')
    p.i('s_barrier')
    if p.opt.get('stop')=='F':
        p.i('s_branch L_fin')
    else:
        t=flags4_load(p,60,W2F)
        p.poll(t, lambda: flags4_load(p,60,W2F), lambda: flags4_check(p,60))
        w2p_setup(p)
        for it in range(14):
            for m in range(5): w2p_load(p,it,m)
        p.i('s_branch L_noconv')
    p.pop()

def w2reg(it,m):
    k=it*5+m
    if k<24: return f'a[{160+4*k}:{163+4*k}]'
    if k<64: return f'a[{4*(k-24)}:{4*(k-24)+3}]'
    return f'v[{232+4*(k-64)}:{235+4*(k-64)}]'
def w2p_setup(p):
    p.i(f'''
    s_mul_i32 s90, s60, 276480
    s_mul_i32 s91, s3, 5120
    s_add_u32 s90, s90, s91
    s_add_u32 s90, s90, {W2P}
    s_add_u32 s91, s90, {13*20480}
    s_cmp_lt_u32 s3, 2
    s_cselect_b32 s91, s91, {OOB:#x}
    v_add_u32 v2, 0x1000, v1''')
def w2p_load(p,it,m,first=False):
    if (m==0 or first) and 0<it<13: p.i(f's_add_u32 s92, s90, {it*20480}')
    so='s90' if it==0 else ('s91' if it==13 else 's92')
    return p.vm(f'buffer_load_dwordx4 {w2reg(it,m)}, v{2 if m==4 else 1}, s[44:47], {so} offen '+(f'offset:{m*1024} ' if 0<m<4 else '')+'sc1')

def finish(p):
    p.label('L_fin')
    if p.opt.get('stamps'):
        p.wvm0()
        p.i('s_memtime s[98:99]\ns_memrealtime s[96:97]'); p.wds0()
        p.i('s_mov_b32 s87, s98\ns_mov_b32 s88, s94\ns_mov_b32 s89, s96')
        p.i(f's_lshl_b32 s56, s2, 2\ns_add_u32 s56, s56, s3\ns_lshl_b32 s56, s56, 7\ns_add_u32 s56, s56, {STAMP}\nv_mov_b32 v9, 0\ns_mov_b64 exec, 1')
        for q in range(5):
            for e in range(4):
                k=70+4*q+e
                if k<88: p.i(f's_sub_u32 s57, s{k}, s68\nv_mov_b32 v{4+e}, s57')
                else: p.i(f'v_mov_b32 v{4+e}, s{k}')
            p.vm(f'buffer_store_dwordx4 v[4:7], v9, s[44:47], s56 offen offset:{16*q}')
            p.i('s_nop 1')
    p.i('s_endpgm')
    p.label('L_codeend')

def build(opt):
    import gen_g
    p=G(opt)
    prologue(p)
    if opt.get('stamps'):
        for k in range(70,88): p.i(f's_mov_b32 s{k}, s68')
    fpath(p)
    p.label('L_G')
    if opt.get('stamps'):
        for k in range(70,88): p.i(f's_mov_b32 s{k}, s68')
    gen_g.gpath(p)
    finish(p)
    ops=resolve_waits(p.ops)
    ops,npad=hazards(ops, opt.get('verbose'))
    ops,size,mis,pads=align8(ops)
    print(f'; hazard nops {npad}, code {size} B, misaligned8 {mis}, align pads {pads}', file=sys.stderr)
    hdr=open('parallel_sum__ssm_conv_s4d__mixer_channel_mlp__prompt.s.ref').read().split('; Override')[0]
    s=hdr+f'''; @launch grid=(256,1,1) block=(256,1,1) lds=163840
.amdgcn_target "amdgcn-amd-amdhsa--gfx950"
.text
.globl {NAME}
.p2align 8
.type {NAME},@function
{NAME}:
'''+render(ops)+f'''.section .rodata,"a"
.p2align 6
.amdhsa_kernel {NAME}
  .amdhsa_next_free_vgpr 512
  .amdhsa_next_free_sgpr 102
  .amdhsa_accum_offset 256
  .amdhsa_group_segment_fixed_size 0
  .amdhsa_kernarg_size 120
  .amdhsa_user_sgpr_count 2
  .amdhsa_user_sgpr_kernarg_segment_ptr 1
  .amdhsa_system_sgpr_workgroup_id_x 1
.end_amdhsa_kernel
'''
    return s

if __name__=='__main__':
    opt={}
    out=sys.argv[1]
    for a in sys.argv[2:]:
        k,_,v=a.partition('='); opt[k]=v if v else True
    open(out,'w').write(build(opt))
```

```python
from gen import *
from gen_g import spread
UO=0; K0=4608; K1=8768; TB=12928
YST=16384; XST=29696; OST=32768

def expand(q):
    q.i(f'''
    v_cmp_eq_u32 vcc, 0, v0
    v_and_b32 v40, 15, v0
    v_lshrrev_b32 v41, 4, v0
    v_cndmask_b32 v42, 0, v39, vcc
    v_add_f32 v26, v26, v42
    s_add_u32 s56, s65, {TB}
    v_lshrrev_b32 v42, 5, v0
    v_bfe_u32 v43, v0, 4, 1
    v_lshlrev_b32 v44, 4, v40
    v_lshl_add_u32 v44, v42, 8, v44
    v_lshl_add_u32 v44, v43, 3, v44
    v_add_u32 v44, s56, v44
    v_lshlrev_b32 v45, 3, v40
    v_lshl_add_u32 v45, v43, 7, v45
    v_lshlrev_b32 v46, 2, v40
    v_lshl_add_u32 v46, v43, 7, v46
    v_add_u32 v46, {784-528}, v46
    v_cmp_gt_u32 vcc, 32, v0
    v_mov_b32 v47, 60
    v_cndmask_b32 v45, v46, v45, vcc
    v_cndmask_b32 v47, v47, 0, vcc
    v_add_u32 v45, s56, v45
    v_lshlrev_b32 v46, 1, v40
    v_lshl_add_u32 v46, v41, 7, v46
    v_add_u32 v46, s56, v46
    v_add_u32 v47, v47, v45
    v_mov_b32 v48, 0
    v_mov_b32 v49, 0
    v_mov_b32 v50, 0
    v_mov_b32 v51, 0''')
    for t in range(3):
        q.i(f'v_cvt_pk_bf16_f32 v{52+2*t}, v{26+4*t}, v{27+4*t}\nv_cvt_pk_bf16_f32 v{53+2*t}, v{28+4*t}, v{29+4*t}')
    q.i(f'v_mov_b32 v58, s56')
    q.ds('ds_write_b128 v58, v[48:51]')
    q.ds('ds_write_b64 v44, v[52:53] offset:16')
    q.ds('ds_write_b32 v45, v54 offset:528'); q.ds('ds_write_b32 v47, v55 offset:532')
    q.i('s_mov_b32 exec_lo, -1\ns_mov_b32 exec_hi, 0')
    q.ds('ds_write_b16 v46, v56 offset:1040'); q.ds('ds_write_b16_d16_hi v46, v56 offset:1072')
    q.ds('ds_write_b16 v46, v57 offset:1104'); q.ds('ds_write_b16_d16_hi v46, v57 offset:1136')
    q.i('s_mov_b32 exec_lo, 0\ns_mov_b32 exec_hi, 1')
    q.ds('ds_write_b16 v46, v56 offset:1040')
    q.i('s_mov_b64 exec, -1')
    q.i(f'''
    v_lshlrev_b32 v44, 4, v0
    v_add_u32 v44, 16, v44
    v_lshlrev_b32 v45, 3, v0
    v_add_u32 v45, {528-256}, v45
    v_cndmask_b32 v44, v45, v44, vcc
    v_add_u32 v44, s56, v44
    v_cmp_ge_u32 vcc, 32, v0
    v_add_u32 v45, -2, v44
    v_lshl_add_u32 v46, v0, 2, s56
    v_cndmask_b32 v45, v44, v45, vcc''')
    q.ds('ds_read_b64 v[60:61], v44'); q.ds('ds_read_b64 v[62:63], v44 offset:8'); ta=q.ds('ds_read_u16 v64, v45')
    tb=q.ds('ds_read2_b32 v[66:67], v46 offset0:196 offset1:197')
    q.i('v_add_u32 v47, 0x400, v46')
    tc=q.ds('ds_read2_b32 v[68:69], v47 offset0:4 offset1:5')
    q.i(f'''
    s_add_u32 s57, s65, {K0+255*16}
    v_sub_u32 v44, s57, v1
    v_lshlrev_b32 v45, 5, v0
    s_sub_u32 s57, s57, {128*16+16}
    v_sub_u32 v45, s57, v45
    s_mov_b32 s56, 0x01000302
    s_mov_b32 s57, 0x03020504
    s_mov_b32 s58, 0x01000100
    s_mov_b32 s61, 0x03020302
    s_mov_b32 s62, 0x01000504
    s_mov_b32 s63, 0x05040504''')
    P=lambda d,a,b,s_: q.i(f'v_perm_b32 v{d}, v{a}, v{b}, s{s_}')
    q.wds(ta)
    q.i('s_mov_b32 exec_lo, -1\ns_mov_b32 exec_hi, 0')
    P(72,63,63,56);P(73,62,62,56);P(74,61,61,56);P(75,60,60,56)
    P(76,63,62,57);P(77,62,61,57);P(78,61,60,57);P(79,60,64,62)
    q.i('s_mov_b32 exec_lo, 0\ns_mov_b32 exec_hi, -1')
    P(72,62,61,57);P(73,61,61,58);P(74,61,60,57);P(75,60,60,58)
    P(76,61,61,56);P(77,61,61,58);P(78,60,60,56);P(79,60,64,62)
    q.i('s_mov_b64 exec, -1')
    q.ds('ds_write_b128 v44, v[72:75]'); q.ds(f'ds_write_b128 v44, v[76:79] offset:{K1-K0}')
    q.wds(tb)
    P(80,67,67,58);P(81,66,66,61);P(82,66,66,56);P(83,66,66,58)
    P(84,67,66,57);P(85,66,66,61);P(86,66,66,58);P(87,66,66,58)
    q.i('v_add_u32 v46, -1024, v44')
    q.ds('ds_write_b128 v46, v[80:83]'); q.ds(f'ds_write_b128 v46, v[84:87] offset:{K1-K0}')
    q.wds(tc)
    P(72,68,68,61);P(73,68,68,56);P(74,68,68,58);P(75,68,68,58)
    P(76,68,68,61);P(77,68,68,58);P(78,68,68,58);P(79,68,68,58)
    q.ds('ds_write_b128 v45, v[72:75] offset:16'); q.ds(f'ds_write_b128 v45, v[76:79] offset:{K1-K0+16}')
    P(80,69,69,58);P(81,69,69,58);P(82,68,68,61);P(83,68,68,61)
    P(84,69,69,58);P(85,69,68,57);P(86,68,68,61);P(87,68,68,61)
    q.ds('ds_write_b128 v45, v[80:83]'); q.ds(f'ds_write_b128 v45, v[84:87] offset:{K1-K0}')
    q.i(f'''
    v_add_u32 v44, s65, v1
    v_and_b32 v45, 1, v0
    v_lshlrev_b32 v45, 4, v45
    v_bfe_u32 v46, v0, 1, 1
    v_mul_u32_u24 v46, {K1-K0}, v46
    v_add3_u32 v45, v45, v46, s65
    v_add_u32 v45, {K0+4096}, v45
    v_cmp_gt_u32 vcc, 32, v0
    s_nop 1
    v_cndmask_b32 v44, v45, v44, vcc''')
    q.ds('ds_write_b128 v44, v[48:51]')

CA=8; CB=40; CB2=72; CACC=80
HR=112; NHR=30
G2=8
def hreg(it,i,extra=False):
    k=(it*4+i)%NHR
    return HR+4*k

def h_setup(p):
    p.i(f'''
    s_lshl_b32 s56, s59, 2
    s_mul_i32 s90, s56, 55296
    s_lshl_b32 s57, s3, 10
    s_add_u32 s90, s90, s57
    s_add_u32 s90, s90, {HP}
    s_add_u32 s91, s90, {13*4096}
    s_cmp_lt_u32 s3, 2
    s_cselect_b32 s91, s91, {OOB:#x}
    s_lshl_b32 s79, s59, 7
    s_add_u32 s79, s79, {HF}''')
    for i in range(4):
        p.i(f's_add_u32 s56, s3, {1+i}\ns_and_b32 s56, s56, 3\ns_mul_i32 s56, s56, 55296\nv_add_u32 v{4+i}, s56, v1')
def h_load(p,S,it,i,first=False):
    if (i==0 or first) and 0<it<13: p.i(f's_add_u32 s92, s90, {it*4096}')
    so='s90' if it==0 else ('s91' if it==13 else 's92')
    r=hreg(it,i)
    return p.vm(f'buffer_load_dwordx4 v[{r}:{r+3}], v{4+i}, s[44:47], {so} offen sc1', S.ht.setdefault((it,i),Tok(f'h{it},{i}')))
def h_poll(p,tok):
    p.poll(tok, lambda: flags1_load(p,3,'s79'), lambda: check_all(p,3,28))

def conv(p,S):
    opt=p.opt
    S.ht={}
    NPRE=28
    p.i('s_cmp_eq_u32 s93, 0\ns_cbranch_scc0 L_skipconv'); p.push()
    q=Sub(); expand(q)
    q.i(f'''
    v_and_b32 v44, 3, v0
    v_mul_u32_u24 v44, 40960, v44
    v_lshrrev_b32 v45, 2, v0
    v_lshl_add_u32 v44, v45, 4, v44
    s_lshl_b32 s56, s3, 10
    s_add_u32 s56, s56, 512
    v_add_u32 v44, s56, v44''')
    q.wvm(S.tu)
    for m in range(4): q.ds(f'ds_write_b128 v44, v[{216+4*m}:{219+4*m}] offset:{256*m}')
    q.i(f'''
    v_and_b32 v44, 15, v0
    v_lshrrev_b32 v45, 4, v0
    v_lshlrev_b32 v3, 5, v44
    v_lshl_add_u32 v3, v45, 4, v3
    v_add_u32 v3, s65, v3
    v_lshrrev_b32 v46, 1, v44
    v_lshlrev_b32 v45, 2, v45
    v_sub_u32 v45, v45, v46
    v_lshlrev_b32 v45, 2, v45
    v_and_b32 v46, 1, v44
    v_xor_b32 v46, 1, v46
    v_mul_u32_u24 v46, {K1-K0}, v46
    v_add3_u32 v45, v45, v46, s65''')
    for g2 in range(4): q.i(f'v_add_u32 v{4+g2}, {K0+4*(1015-128*(2*g2+1)-112)}, v45')
    k0=S.w2next; n1=min(6,70-k0)
    spread(p,q.ops,[lambda p,k=k: w2p_load(p,k,k==k0) for k in range(k0,k0+n1)],0.0,0.95)
    k0+=n1
    p.stamp('e0')
    p.wvm(S.th); set_flag(p,'s97',44)
    p.wds0(); p.i('s_barrier')
    p.stamp('e')
    ta={};tb={}
    def breg(j,c): return (CB+4*j) if (j>=2 or c%2==0) else CB2+4*j
    def rdA(q,g,c):
        o=128*(1-(g&1))+16*(7-c); r=CA+4*g
        q.ds(f'ds_read2_b32 v[{r}:{r+1}], v{4+g//2} offset0:{o} offset1:{o+1}')
        ta[g,c]=q.ds(f'ds_read2_b32 v[{r+2}:{r+3}], v{4+g//2} offset0:{o+2} offset1:{o+3}')
    def rdB(q,j,c):
        r=breg(j,c); tb[j,c]=q.ds(f'ds_read_b128 v[{r}:{r+3}], v3 offset:{480+512*j-64*c}')
    rdA(p,0,0)
    for j in range(7,-1,-1): rdB(p,j,0)
    for g in range(1,8): rdA(p,g,0)
    groups=[]
    for c in range(8):
        cnt=0
        for g in range(8):
            for j in range(7-g,-1,-1):
                q=Sub(); n=g+j; a=CACC+4*n
                q.wds(ta[g,c]); q.wds(tb[j,c])
                q.i(f'v_mfma_f32_16x16x32_bf16 v[{a}:{a+3}], v[{CA+4*g}:{CA+4*g+3}], v[{breg(j,c)}:{breg(j,c)+3}], '+('0' if (c==0 and g==0) else f'v[{a}:{a+3}]'))
                if c<7:
                    if j==7-g and j>=2: rdB(q,j,c+1)
                    if j==0: rdA(q,g,c+1)
                    if g==3 and j in (2,3): rdB(q,3-j,c+1)
                groups.append(q.ops)
    side={}
    def at(g,fn): side.setdefault(g,[]).append(fn)
    g=2
    for k in range(k0,70):
        at(g,lambda p,k=k: w2p_load(p,k,k==k0)); g+=4
    gp=int(opt.get('gpoll',130)); assert g<=gp, g
    at(72,lambda p: p.stamp('c72'))
    def hs(p):
        p.i(f's_lshl_b32 s79, s59, 7\ns_add_u32 s79, s79, {HF}'); S.tf=w0_load(p,2,'s79')
    at(gp,hs)
    S.hv=None
    def hp(p):
        p.stamp('p0')
        w0_poll(p,2,'s79',28,S.tf)
        p.stamp('p1')
        h_setup2(p)
    at(gp+24,hp)
    g=gp+26
    for k in range(NPRE):
        at(min(g,287),lambda p,k=k: h_load2(p,S,k//4,k%4)); g+=4
    for g,grp in enumerate(groups):
        for o in grp: p.add(o)
        for fn in side.get(g,[]): fn(p)
    p.stamp('f')
    p.i(f'''
    v_and_b32 v8, 15, v0
    v_lshlrev_b32 v8, 5, v8
    v_bfe_u32 v9, v0, 4, 1
    v_lshl_add_u32 v8, v9, 9, v8
    v_lshrrev_b32 v9, 5, v0
    v_lshl_add_u32 v8, v9, 4, v8
    s_lshl_b32 s56, s86, 2
    s_add_u32 s56, s56, s3
    s_lshl_b32 s57, s56, 12
    s_add_u32 s57, s57, {YB}
    s_mul_i32 s58, s34, 80
    s_sub_u32 s56, s56, s58
    s_mul_i32 s58, s56, 205
    s_lshr_b32 s58, s58, 12
    s_mul_i32 s58, s58, {128-80}
    s_lshl_b32 s56, s56, 2
    s_add_u32 s58, s58, s56
    s_lshl_b32 s56, s34, 12
    s_add_u32 s58, s58, s56
    s_add_u32 s58, s58, {YF}''')
    for n in range(0,8,2):
        o=12+2*n
        for u in range(2):
            a=CACC+4*(n+u); p.i(f'v_cvt_pk_bf16_f32 v{o+2*u}, v{a}, v{a+1}\nv_cvt_pk_bf16_f32 v{o+2*u+1}, v{a+2}, v{a+3}')
    for n in range(0,8,2):
        o=12+2*n
        p.i(f'v_permlane16_swap_b32 v{o}, v{o+2}\nv_permlane16_swap_b32 v{o+1}, v{o+3}')
    for n in range(0,8,2):
        o=12+2*n
        S.ty=p.vm(f'buffer_store_dwordx4 v[{o}:{o+3}], v8, s[44:47], s57 offen '+(f'offset:{512*n} ' if n else '')+'sc1')
    p.i('s_mov_b32 s93, 0\ns_branch L_g2'); p.pop()
    p.label('L_skipconv'); p.push()
    for k in range(S.w2next,70): w2p_load(p,k,k==S.w2next)
    p.wvm(S.th); set_flag(p,'s97',44)
    p.i('s_lshr_b32 s86, s35, 2\ns_sub_u32 s86, s86, 5')
    p.pop()
    p.label('L_noconv'); p.push()
    p.i(f's_lshl_b32 s79, s59, 7\ns_add_u32 s79, s79, {HF}\ns_mov_b32 s93, 1')
    w0_poll(p,2,'s79',28,None,6)
    if int(opt.get('ht',1)): h_touch(p)
    h_setup2(p)
    for k in range(NPRE): h_load2(p,S,k//4,k%4)
    p.pop()
    p.label('L_g2')
    S.hnext=NPRE

HV=224
NH2=28
def hreg2(it,i): return HR+4*((it*4+i)%NH2)
def h_setup2(p):
    p.i(f'''
    s_mul_i32 s90, s59, {4*55296}
    s_lshl_b32 s57, s3, 10
    s_add_u32 s90, s90, s57
    s_add_u32 s90, s90, {HP}''')
    step_bases(p,'s90',4096)
    for i in range(4):
        p.i(f's_add_u32 s56, s3, {1+i}\ns_and_b32 s56, s56, 3\ns_mul_i32 s56, s56, 55296\nv_add_u32 v{HV+i}, s56, v1')
def h_load2(p,S,it,i):
    so=step_soff(p,it,4096,i==0)
    r=hreg2(it,i)
    return p.vm(f'buffer_load_dwordx4 v[{r}:{r+3}], v{HV+i}, s[44:47], {so} offen sc1', S.ht.setdefault((it,i),Tok(f'h{it},{i}')))
def h_touch(p):
    p.i(f'''
    s_lshl_b32 s56, s86, 2
    s_add_u32 s56, s56, s3
    s_mul_i32 s56, s56, {144*128}
    s_mul_i32 s57, s59, {4*55296}
    s_add_u32 s56, s56, s57
    s_add_u32 s56, s56, {HP}
    v_min_u32 v8, 47, v0
    v_lshlrev_b32 v8, 7, v8''')
    for t in range(3):
        p.i(f's_add_u32 s57, s56, {48*128*t}')
        p.vm(f'buffer_load_dword v{9+t}, v8, s[44:47], s57 offen sc1')

def yfl(p): return p.vm('buffer_load_dword v228, v229, s[44:47], s79 offen sc1')
def gemm2(p,S):
    opt=p.opt
    if opt.get('stop')=='Y':
        p.i('s_cmp_eq_u32 s93, 0\ns_cbranch_scc0 L_fin'); p.wvm0(); set_flag(p,'s58',44,8,512); p.wvm0(); return
    p.stamp('g')
    acc=lambda i,m: G2+20*i+4*m
    order=[(it,i) for it in range(10) for i in range(4)]+[(it,i) for i in range(4) for it in range(10,14)]
    groups=[]; first=set()
    for (it,i) in order:
        for m in range(5):
            q=Sub()
            if m==0: q.wvm(S.ht.setdefault((it,i),Tok(f'h{it},{i}')))
            a=acc(i,m); r=hreg2(it,i)
            q.i(f'v_mfma_f32_16x16x32_bf16 v[{a}:{a+3}], {w2reg(it,m)}, v[{r}:{r+3}], '+('0' if it==0 else f'v[{a}:{a+3}]'))
            groups.append(q.ops)
    side={}
    def at(g,fn): side.setdefault(g,[]).append(fn)
    for k in range(S.hnext,56):
        at(5*(k-NH2)+4,lambda p,k=k: h_load2(p,S,k//4,k%4))
    def yf(p):
        l=p.lab('Lyf'); p.i(f's_cmp_eq_u32 s93, 0\ns_cbranch_scc0 {l}'); p.push(); p.wvm(S.ty); set_flag(p,'s58',228,8,512); p.pop(); p.label(l)
    at(int(opt.get('gyf',40)),yf)
    def su(p):
        p.i(f'''
        s_mov_b32 s56, 0x199a
        s_lshl_b32 s61, s59, 2
        s_add_u32 s61, s61, s3
        s_mul_i32 s61, s61, {16*1280}
        s_mul_i32 s57, s60, 160
        s_add_u32 s61, s61, s57
        s_mul_i32 s65, s3, 40960''')
        for t in range(3):
            p.i(f'''
            v_add_u32 v94, {64*t}, v0
            v_mul_u32_u24 v95, s56, v94
            v_lshrrev_b32 v95, 16, v95
            v_mul_u32_u24 v96, {1280-160}, v95
            v_lshl_add_u32 v{88+t}, v94, 4, v96''')
        p.i(f'v_lshrrev_b32 v94, 5, v0\nv_lshlrev_b32 v94, 31, v94\nv_or_b32 v90, v90, v94')
        tt=None
        for t in range(3):
            p.i(f's_add_u32 m0, s65, {XST+1024*t}')
            tt=p.vm(f'buffer_load_dwordx4 v{88+t}, s[36:39], s61 offen lds')
        S.txs=tt
        p.i(f's_mul_i32 s57, s60, 160\nv_lshrrev_b32 v95, 4, v0\nv_lshl_add_u32 v95, v95, 3, s57')
        for m in range(5): S.tb2=p.vm(f'global_load_dwordx2 v[{96+2*m}:{97+2*m}], v95, s[26:27]'+(f' offset:{32*m}' if m else ''))
    at(60,su)
    at(59,lambda p: p.stamp('g60')); at(120,lambda p: p.stamp('g120')); at(200,lambda p: p.stamp('g200'))
    def y0(p):
        p.i(f's_lshl_b32 s79, s60, 3\ns_add_u32 s79, s79, s34\ns_lshl_b32 s79, s79, 2\ns_add_u32 s79, s79, s3\ns_lshl_b32 s79, s79, 7\ns_add_u32 s79, s79, {YF}\nv_min_u32 v229, 19, v0\nv_lshlrev_b32 v229, 2, v229'); S.tf=yfl(p)
        p.i(f'''
        v_lshrrev_b32 v91, 3, v0
        v_and_b32 v92, 7, v0
        v_lshlrev_b32 v92, 4, v92
        v_mul_u32_u24 v95, 160, v91
        v_add_u32 v95, v95, v92
        v_lshl_add_u32 v91, v91, 12, v92
        v_add_u32 v92, 0x8000, v91
        v_add_u32 v93, 0x10000, v91
        v_or_b32 v93, v93, v94
        s_mul_i32 s56, s3, {20*160}
        s_add_u32 s56, s56, {YST}
        v_add_u32 v95, s56, v95
        s_mul_i32 s62, s60, 80
        s_mul_i32 s56, s3, 20
        s_add_u32 s62, s62, s56
        s_lshl_b32 s62, s62, 12
        s_lshl_b32 s56, s59, 7
        s_add_u32 s62, s62, s56
        s_add_u32 s62, s62, {YB}''')
    gy=int(opt.get('gy',128))
    at(gy,y0)
    YR=232
    def y1(p):
        p.stamp('y0')
        p.poll(S.tf, lambda: yfl(p), lambda: check_all(p,228,64), 4)
        p.stamp('y1')
        for t in range(3): S.tyl=p.vm(f'buffer_load_dwordx4 v[{HR+4*t}:{HR+4*t+3}], v{91+t}, s[44:47], s62 offen sc1')
    at(gy+32,y1)
    assert gy+32>=155
    def y2(p):
        p.wvm(S.tyl)
        p.ds(f'ds_write_b128 v95, v[{HR}:{HR+3}]'); p.ds(f'ds_write_b128 v95, v[{HR+4}:{HR+7}] offset:{8*160}')
        p.i('s_mov_b32 exec_lo, -1\ns_mov_b32 exec_hi, 0'); p.ds(f'ds_write_b128 v95, v[{HR+8}:{HR+11}] offset:{16*160}'); p.i('s_mov_b64 exec, -1')
        p.wds0(); p.i('s_barrier')
        p.i(f'''
        v_and_b32 v91, 15, v0
        v_mul_u32_u24 v91, 160, v91
        v_lshrrev_b32 v92, 4, v0
        v_lshl_add_u32 v91, v92, 3, v91
        v_add_u32 v91, s65, v91
        v_lshrrev_b32 v92, 2, v0
        v_mul_u32_u24 v92, 160, v92
        v_and_b32 v93, 3, v0
        v_lshl_add_u32 v92, v93, 3, v92
        s_lshl_b32 s56, s3, 5
        s_add_u32 s56, s56, {YST}
        v_add_u32 v92, s56, v92''')
        p.wvm(S.txs)
        for m in range(5):
            p.ds(f'ds_read_b64 v[{HR+2*m}:{HR+2*m+1}], v91 offset:{XST+32*m}')
            S.tyr=p.ds(f'ds_read_b64_tr_b16 v[{HR+10+2*m}:{HR+11+2*m}], v92 offset:{16*160*m}')
    at(gy+60,y2)
    assert gy+60>=5*36 and gy+60<200
    BS=HR+20
    def mkbase():
        q=Sub(); q.wds(S.tyr); q.wvm(S.tb2)
        for m in range(5):
            for d in range(2):
                o=BS+4*m+2*d; x=HR+2*m+d; y=HR+10+2*m+d; b=96+2*m+d
                q.i(f'''
                v_lshlrev_b32 v{o}, 16, v{x}
                v_and_b32 v{o+1}, 0xffff0000, v{x}
                v_lshlrev_b32 v106, 16, v{y}
                v_and_b32 v107, 0xffff0000, v{y}
                v_lshlrev_b32 v108, 16, v{b}
                v_and_b32 v109, 0xffff0000, v{b}
                v_add_f32 v{o}, v{o}, v106
                v_add_f32 v{o+1}, v{o+1}, v107
                v_add_f32 v{o}, v{o}, v108
                v_add_f32 v{o+1}, v{o+1}, v109''')
        return q.ops
    def pa(p):
        p.i(f'v_add_u32 v93, s65, v1')
        for i in range(3):
            p.i(f's_sub_u32 s56, s3, {1+i}\ns_and_b32 s56, s56, 3\ns_mul_i32 s56, s56, 40960\ns_add_u32 s56, s56, {5120*i}\nv_add_u32 v{228+i}, s56, v1')
    at(199,pa)
    for i in range(3):
        for m in range(5):
            at(200+20*(i+1)+4+2*m, lambda p,i=i,m=m: p.ds(f'ds_write_b128 v93, v[{acc(i,m)}:{acc(i,m)+3}] offset:{5120*i+1024*m}'))
    sec=None; k2=0
    for g,grp in enumerate(groups):
        for o in grp: p.add(o)
        for fn in side.get(g,[]): fn(p)
        if g>=gy+64:
            if sec is None: sec=mkbase()
            nb=0
            while k2<len(sec) and nb<2:
                nb+=sec[k2].kind=='i'; p.add(sec[k2]); k2+=1
        if g==273:
            p.wds0(); p.i('s_barrier')
            tr=[]
            for i in range(3):
                for m in range(5): tr.append(p.ds(f'ds_read_b128 v[{acc(i,m)}:{acc(i,m)+3}], v{228+i} offset:{1024*m}'))
    for o in sec[k2:]: p.add(o)
    p.stamp('h')
    for i in range(3):
        for m in range(5):
            p.wds(tr[5*i+m])
            for d in (0,2): p.i(f'v_pk_add_f32 v[{BS+4*m+d}:{BS+4*m+d+1}], v[{BS+4*m+d}:{BS+4*m+d+1}], v[{acc(i,m)+d}:{acc(i,m)+d+1}]')
    for m in range(5):
        for d in (0,2): p.i(f'v_pk_add_f32 v[{BS+4*m+d}:{BS+4*m+d+1}], v[{BS+4*m+d}:{BS+4*m+d+1}], v[{acc(3,m)+d}:{acc(3,m)+d+1}]')
    for m in range(5):
        p.i(f'v_cvt_pk_bf16_f32 v{8+2*m}, v{BS+4*m}, v{BS+4*m+1}\nv_cvt_pk_bf16_f32 v{9+2*m}, v{BS+4*m+2}, v{BS+4*m+3}')
        p.ds(f'ds_write_b64 v91, v[{8+2*m}:{9+2*m}] offset:{OST+32*m}')
    to=[p.ds(f'ds_read_b128 v[{20+4*t}:{23+4*t}], v93 offset:{OST+1024*t}') for t in range(3)]
    for t in range(3):
        p.wds(to[t]); p.vm(f'buffer_store_dwordx4 v[{20+4*t}:{23+4*t}], v{88+t}, s[48:51], s61 offen')
    l=p.lab('Lep'); p.i(f's_or_b32 s56, s2, s3\ns_cmp_lg_u32 s56, 0\ns_cbranch_scc1 {l}'); p.push()
    p.i(f'''
    v_lshrrev_b32 v8, 3, v0
    v_lshlrev_b32 v8, 12, v8
    v_bfe_u32 v9, v0, 1, 2
    v_lshl_add_u32 v8, v9, 7, v8
    v_and_b32 v9, 1, v0
    v_lshl_add_u32 v8, v9, 5, v8
    s_mov_b32 s79, {YF}''')
    def ld():
        for k in range(3): t=p.vm(f'buffer_load_dwordx4 v[{12+4*k}:{15+4*k}], v8, s[44:47], s79 offen offset:{16*k} sc1')
        return t
    def ck():
        p.i('s_mov_b64 s[56:57], -1')
        for k in range(12): p.i(f'v_cmp_eq_u32 vcc, s76, v{12+k}\ns_and_b64 s[56:57], s[56:57], vcc')
        p.i('s_cmp_eq_u64 s[56:57], -1')
    p.poll(ld(), ld, ck)
    set_flag(p,'0',8)
    p.pop(); p.label(l)
```

```python
from gen import *
C_G=2*math.sqrt(2/math.pi)*1.4426950408889634
XU={j:2*(j%3) for j in range(10)}
BU={0:6,1:7,2:8,3:9,4:10,5:11,10:12,11:13,12:14,6:15,7:16,8:17,9:18,13:19,14:2,15:3,16:4,17:5,18:0,19:1}
SEQ_INIT='x0 b0 x1'.split()
SEQ_K='x2 b1 d0 x3 b2 d1 x4 b3 d2 x5 b4 b10 d3 x6 b5 b11 d4 x7 b12'.split()
SEQ_H='b6 b7 d5 x8 b8 d6 x9 b9 b13 d7 b14 b15 d8 b16 b17 d9 b18 b19'.split()
STG=15*2048

class St: pass

def item(S,e):
    k=int(e[1:])
    if e[0]=='d':
        def rd(p):
            p.stamp(f'w{k}')
            p.wvm(S.tok[f'x{k}'])
            p.stamp(f'd{k}')
            t=S.dtok.setdefault(k,Tok(f'd{k}'))
            for i in range(4):
                r=16*k+4*i
                p.ds(f'ds_read_b128 a[{r}:{r+3}], v{16+i} offset:{XU[k]*2048}', t if i==3 else None)
            S.pend=t
        return [rd]
    t=S.tok.setdefault(e,Tok(e))
    def head(p,unit,lo,hi,j,add):
        if S.pend is not None: p.wds(S.pend); S.pend=None
        p.i(f's_add_u32 m0, s65, {unit*2048}')
        p.i(f's_cmp_ge_u32 s64, {10-j}\ns_cselect_b32 s57, s{hi}, s{lo}\ns_add_u32 s57, s57, {add}')
    if e[0]=='x':
        def f(p,q):
            if q==0: head(p,XU[k],66,94 if False else 95,k,128*k)
            p.vm(f'buffer_load_dwordx4 v{10+q}, s[36:39], s57 offen '+(f'offset:{1024*q} ' if q else '')+'lds', t if q==3 else None)
        return [lambda p,q=q: f(p,q) for q in range(4)]
    h,j=divmod(k,10)
    def f0(p):
        head(p,BU[k],67,69,j,j*64*3456+128*h)
        p.vm('buffer_load_dwordx4 v14, s[40:43], s57 offen lds')
    def f1(p): p.vm('buffer_load_dwordx4 v15, s[40:43], s57 offen offset:1024 lds', t)
    return [f0,f1]
def events(S, seq):
    return [f for e in seq for f in item(S,e)]

def spread(p, main, evs, lo=0.0, hi=1.0):
    n=len(main); k=0
    posn=[int(n*(lo+(hi-lo)*(i+0.5)/len(evs))) for i in range(len(evs))] if evs else []
    masked=False
    for i,o in enumerate(main):
        while k<len(evs) and posn[k]<=i and not masked: evs[k](p); k+=1
        p.add(o)
        if 'exec' in o.text: masked = o.text!='s_mov_b64 exec, -1'
    while k<len(evs): evs[k](p); k+=1

def cmul(q, items):
    for n,(o,x,w) in enumerate(items):
        q.i(f'v_pk_mul_f32 v[{44+2*n}:{45+2*n}], v[{x}:{x+1}], v[{w}:{w+1}] op_sel_hi:[1,0]')
    for n,(o,x,w) in enumerate(items):
        q.i(f'v_pk_fma_f32 v[{o}:{o+1}], v[{x}:{x+1}], v[{w}:{w+1}], v[{44+2*n}:{45+2*n}] op_sel:[1,1,0] op_sel_hi:[0,1,1] neg_lo:[0,1,0]')

def kgen(S,p):
    q=Sub()
    B=[56,104]
    Z1,Z8,Z128,Z256,Z512,Z1024=0,2,4,6,8,10
    G=lambda k: 12+2*k
    p.stamp('f0',q)
    q.wvm(S.tpar)
    p.stamp('f1',q)
    q.i(f'v_lshlrev_b32 v38, 16, v38\nv_mul_f32 v38, {LOG2E:#x}, v38\nv_exp_f32 v38, v38\nv_lshlrev_b32 v39, 16, v39')
    bf16r(q,'v38','v38')
    for n,b in enumerate(B):
        un=(lambda d,s_: q.i(f'v_lshlrev_b32 v{d}, 16, v{s_}')) if n==0 else (lambda d,s_: q.i(f'v_and_b32 v{d}, 0xffff0000, v{s_}'))
        un(b+40,40); un(b+41,41); un(b+42,42); un(b+43,43)
    for b in B: q.i(f'v_mul_f32 v{b+40}, {LOG2E:#x}, v{b+40}\nv_mul_f32 v{b+41}, v{b+41}, v38')
    for b in B: q.i(f'v_exp_f32 v{b+40}, v{b+40}')
    for b in B: q.i(f'v_mul_f32 v{b+41}, {INV2PI:#x}, v{b+41}\nv_mul_f32 v{b+42}, v{b+42}, v38\nv_mul_f32 v{b+43}, v{b+43}, v38')
    for b in B: bf16r(q,f'v{b+40}',f'v{b+40}')
    for b in B: q.i(f'v_mul_f32 v{b+40}, v{b+40}, v38\nv_add_f32 v{b+G(0)}, v{b+42}, v{b+42}\nv_add_f32 v{b+G(0)+1}, v{b+43}, v{b+43}')
    for b in B: q.i(f'v_mul_f32 v{b+40}, {f2u(-1.4426950408889634):#x}, v{b+40}')
    for b in B: q.i(f'v_mul_f32 v{b+42}, 0x43000000, v{b+40}\nv_mul_f32 v{b+43}, 0x43000000, v{b+41}')
    for b in B: q.i(f'v_fract_f32 v{b+41}, v{b+41}\nv_fract_f32 v{b+43}, v{b+43}')
    for b in B: q.i(f'v_exp_f32 v{b+40}, v{b+40}\nv_exp_f32 v{b+42}, v{b+42}\nv_cos_f32 v{b+Z1}, v{b+41}\nv_sin_f32 v{b+Z1+1}, v{b+41}\nv_cos_f32 v{b+Z128}, v{b+43}\nv_sin_f32 v{b+Z128+1}, v{b+43}')
    for b in B:
        q.i(f'v_pk_mul_f32 v[{b+Z1}:{b+Z1+1}], v[{b+Z1}:{b+Z1+1}], v[{b+40}:{b+41}] op_sel_hi:[1,0]')
        q.i(f'v_pk_mul_f32 v[{b+Z128}:{b+Z128+1}], v[{b+Z128}:{b+Z128+1}], v[{b+42}:{b+43}] op_sel_hi:[1,0]')
    cmul(q,[(b+Z8,b+Z1,b+Z1) for b in B]+[(b+Z256,b+Z128,b+Z128) for b in B])
    cmul(q,[(b+Z8,b+Z8,b+Z8) for b in B]+[(b+Z512,b+Z256,b+Z256) for b in B])
    cmul(q,[(b+Z8,b+Z8,b+Z8) for b in B]+[(b+Z1024,b+Z512,b+Z512) for b in B])
    p.stamp('f2',q)
    wr=[0]
    def row(r, off, neg):
        o=152+2*(wr[0]%4); wr[0]+=1
        for n,b in enumerate(B): q.i(f'v_cvt_pk_bf16_f32 v{o+n}, v{b+off}, {"-" if neg else ""}v{b+off+1}')
        return q.ds(f'ds_write_b64 v8, v[{o}:{o+1}] offset:{r*544}')
    def frags(base):
        return [q.ds(f'ds_read_b128 v[{base+4*k}:{base+4*k+3}], v9 offset:{64*k}') for k in range(8)]
    E0,E1,Z16=36,38,40
    cmul(q,[(b+Z16,b+Z8,b+Z8) for b in B])
    q.i('v_mov_b32 v160, 0x3f80\nv_mov_b32 v161, 0x3f80'); q.ds('ds_write_b64 v8, v[160:161]')
    row(1,Z8,False); row(2,Z16,False)
    cmul(q,[(b+E1,b+Z8,b+Z16) for b in B]+[(b+E0,b+Z16,b+Z16) for b in B]); row(3,E1,False); row(4,E0,False)
    for j in range(5,15,2):
        cmul(q,[(b+E1,b+E1,b+Z16) for b in B]+[(b+E0,b+E0,b+Z16) for b in B]); row(j,E1,False); row(j+1,E0,False)
    cmul(q,[(b+E1,b+E1,b+Z16) for b in B]); row(15,E1,False)
    EF=164; GF=196
    p.stamp('k1',q)
    te=frags(EF)
    def tile(t):
        tg=frags(GF)
        l=[]
        for k in range(8):
            o=Sub()
            if t==0: o.wds(te[k])
            o.wds(tg[k])
            o.i(f'v_mfma_f32_16x16x32_bf16 v[{26+4*t}:{29+4*t}], v[{GF+4*k}:{GF+4*k+3}], v[{EF+4*k}:{EF+4*k+3}], '+('0' if k==0 else f'v[{26+4*t}:{29+4*t}]'))
            l.append(o.ops)
        return l
    T0,T1=E0,E1
    row(0,G(0),True)
    cmul(q,[(b+T0,b+G(0),b+Z1) for b in B]+[(b+G(4),b+G(0),b+Z128) for b in B]); row(1,T0,True); row(8,G(4),True)
    for k in range(1,4):
        cmul(q,[(b+G(k),b+T0,b+Z1) for b in B]+[(b+T1,b+T0,b+Z128) for b in B]); row(2*k,G(k),True); row(8+2*k-1,T1,True)
        cmul(q,[(b+T0,b+G(k),b+Z1) for b in B]+[(b+G(4+k),b+G(k),b+Z128) for b in B]); row(2*k+1,T0,True); row(8+2*k,G(4+k),True)
    cmul(q,[(b+T1,b+T0,b+Z128) for b in B]); row(15,T1,True)
    p.stamp('k2',q)
    m0=tile(0)
    def mf(l,k):
        for o in l[k]: q.add(o)
    keep={0:G(8),4:G(9),2:G(10),6:G(11)}
    for k in range(0,8,2):
        d0=keep.get(k,T0); d1=T1
        cmul(q,[(b+d0,b+G(k),b+Z256) for b in B]+[(b+d1,b+G(k+1),b+Z256) for b in B]); mf(m0,k); row(k,d0,True); mf(m0,k+1); row(k+1,d1,True)
    src=[(G(0),G(2)),(G(4),G(6)),(G(8),G(10)),(G(9),G(11))]; kp=[G(1),G(3),G(5),G(7)]
    for i in range(4):
        cmul(q,[(b+kp[i],b+src[i][0],b+Z512) for b in B]+[(b+T1,b+src[i][1],b+Z512) for b in B]); row(8+2*i,kp[i],True); row(9+2*i,T1,True)
    p.stamp('k3',q)
    m1=tile(1)
    s3=[G(0),G(4),G(8),G(9),G(1),G(3),G(5),G(7)]
    for i in range(0,8,2):
        d0=G(2) if i==0 else T0
        cmul(q,[(b+d0,b+s3[i],b+Z1024) for b in B]+[(b+T1,b+s3[i+1],b+Z1024) for b in B]); mf(m1,i); row(i,d0,True); mf(m1,i+1); row(i+1,T1,True)
    cmul(q,[(b+T0,b+G(2),b+Z1024) for b in B]); row(8,T0,True)
    m2=tile(2)
    for k in range(8): mf(m2,k)
    return q.ops

def pack(p,S):
    q=Sub()
    q.i(f'''
    v_bfe_u32 v40, v0, 2, 2
    v_bfe_u32 v41, v0, 4, 1
    v_lshl_add_u32 v40, v41, 2, v40
    v_lshlrev_b32 v41, 1, v40
    v_bfe_u32 v42, v0, 1, 1
    v_xor_b32 v41, v41, v42
    s_lshl_b32 s56, s3, 1
    v_xor_b32 v41, s56, v41
    v_lshrrev_b32 v42, 5, v0
    v_mul_u32_u24 v42, 81920, v42
    v_lshl_add_u32 v42, v40, 8, v42
    v_and_b32 v43, 1, v0
    v_lshl_add_u32 v42, v43, 3, v42
    v_add_u32 v42, {STG}, v42
    v_lshl_add_u32 v44, v41, 4, v42
    v_xor_b32 v41, 8, v41
    v_lshl_add_u32 v45, v41, 4, v42
    s_mul_i32 s58, s62, 5120
    s_add_u32 s58, s58, {W2P}
    s_or_b32 s58, s58, s63''')
    q.wvm(S.tw2); q.i('s_barrier')
    tp={}
    for t in range(10):
        b=64+4*t
        q.ds(f'ds_read_b64_tr_b16 v[{b}:{b+1}], v{44+(t&1)} offset:{(t>>1)*2048}')
        tp[t]=q.ds(f'ds_read_b64_tr_b16 v[{b+2}:{b+3}], v{44+(t&1)} offset:{(t>>1)*2048+40960}')
        if t>=2:
            pst(q,t-2,tp)
    pst(q,8,tp); S.tpk=pst(q,9,tp)
    return q.ops
def pst(q,t,tp):
    q.i(f'''
    s_add_u32 s56, s3, {4*t}
    s_mul_i32 s61, s56, 52
    s_lshr_b32 s61, s61, 8
    s_mul_i32 s61, s61, {276480-5120}
    s_lshl_b32 s56, s56, 10
    s_add_u32 s56, s56, s61
    s_add_u32 s56, s56, s58''')
    q.wds(tp[t])
    return q.vm(f'buffer_store_dwordx4 v[{64+4*t}:{67+4*t}], v1, s[44:47], s56 offen sc1')

def gelu_ops(q, acc, out, packed, tmp):
    if packed:
        for g in range(0,8,2):
            prs=[(acc+2*(g+u), tmp+2*u) for u in range(2)]
            for a,t in prs: q.i(f'v_pk_mul_f32 v[{t}:{t+1}], v[{a}:{a+1}], v[{a}:{a+1}]')
            for a,t in prs: q.i(f'v_pk_fma_f32 v[{t}:{t+1}], v[{t}:{t+1}], v[174:175], v[172:173] op_sel_hi:[1,0,0]')
            for a,t in prs: q.i(f'v_pk_mul_f32 v[{t}:{t+1}], v[{t}:{t+1}], v[{a}:{a+1}]')
            for a,t in prs: q.i(f'v_exp_f32 v{t}, v{t}\nv_exp_f32 v{t+1}, v{t+1}',cost=2)
            for a,t in prs: q.i(f'v_pk_fma_f32 v[{t}:{t+1}], v[{t}:{t+1}], v[176:177], v[176:177] op_sel_hi:[1,0,0]')
            for a,t in prs: q.i(f'v_rcp_f32 v{t}, v{t}\nv_rcp_f32 v{t+1}, v{t+1}',cost=2)
            for a,t in prs: q.i(f'v_pk_mul_f32 v[{t}:{t+1}], v[{t}:{t+1}], v[{a}:{a+1}]')
            for u,(a,t) in enumerate(prs): q.i(f'v_cvt_pk_bf16_f32 v{out+g+u}, v{t}, v{t+1}')
    else:
        for g in range(8):
            a=acc+2*g; t=tmp+2*(g&1)
            q.i(f'v_mul_f32 v{t}, v{a}, v{a}\nv_mul_f32 v{t+1}, v{a+1}, v{a+1}')
            q.i(f'v_fma_f32 v{t}, v{t}, v174, v172\nv_fma_f32 v{t+1}, v{t+1}, v174, v172')
            q.i(f'v_mul_f32 v{t}, v{t}, v{a}\nv_mul_f32 v{t+1}, v{t+1}, v{a+1}')
            q.i(f'v_exp_f32 v{t}, v{t}\nv_exp_f32 v{t+1}, v{t+1}',cost=2)
            q.i(f'v_fma_f32 v{t}, v{t}, v176, v176\nv_fma_f32 v{t+1}, v{t+1}, v176, v176')
            q.i(f'v_rcp_f32 v{t}, v{t}\nv_rcp_f32 v{t+1}, v{t+1}',cost=2)
            q.i(f'v_mul_f32 v{t}, v{t}, v{a}\nv_mul_f32 v{t+1}, v{t+1}, v{a+1}')
            q.i(f'v_cvt_pk_bf16_f32 v{out+g}, v{t}, v{t+1}')
def hstore(q,h,mt,out):
    so=f's{84+h}'
    q.vm(f'buffer_store_dwordx4 v[{out}:{out+3}], v3, s[44:47], {so} offen '+(f'offset:{1024*mt} ' if mt else '')+'sc1')
    return q.vm(f'buffer_store_dwordx4 v[{out+4}:{out+7}], v3, s[44:47], {so} offen offset:{1024*mt+512} sc1')

def ext_load(p,h):
    if h==0: p.vm('buffer_load_dwordx4 v[168:171], v4, s[44:47], s82 offen sc1')
    p.vm(f'buffer_load_dwordx4 v[{152+8*h}:{155+8*h}], v5, s[44:47], s{80+h} offen sc1')
    return p.vm(f'buffer_load_dwordx4 v[{156+8*h}:{159+8*h}], v5, s[44:47], s{80+h} offen offset:512 sc1')
def ext_check(p,h):
    p.i(f'v_cmp_eq_u32 vcc, s76, v{155+8*h}\nv_cmp_eq_u32 s[56:57], s76, v{159+8*h}\ns_and_b32 vcc_lo, vcc_lo, s56\ns_mov_b32 vcc_hi, -1')
    if h==0: p.i('v_cmp_eq_u32 s[56:57], s76, v169\ns_and_b64 vcc, vcc, s[56:57]')
    p.i('s_cmp_eq_u64 vcc, -1')

def gpath(p):
    S=St(); S.tok={}; S.dtok={}; S.pend=None
    opt=p.opt
    p.i(f'''
    s_sub_u32 s61, s35, 4
    s_and_b32 s56, s61, 3
    s_lshr_b32 s57, s34, 1
    s_lshl_b32 s57, s57, 2
    s_add_u32 s64, s56, s57
    s_lshr_b32 s56, s61, 2
    s_and_b32 s57, s34, 1
    s_mul_i32 s57, s57, 7
    s_add_u32 s58, s56, s57
    s_mul_i32 s65, s3, 40960
    s_lshl_b32 s56, s64, 2
    s_add_u32 s56, s56, s3
    s_mul_i32 s66, s56, {32*1280}
    s_lshl_b32 s82, s56, 9
    s_add_u32 s82, s82, {STAT}
    s_mul_i32 s84, s56, {2*55296}
    s_lshl_b32 s57, s58, 12
    s_add_u32 s84, s84, s57
    s_add_u32 s84, s84, {HP}
    s_add_u32 s85, s84, 2048
    s_lshl_b32 s80, s58, 11
    s_add_u32 s80, s80, {AEXT}
    s_add_u32 s81, s80, 1024
    s_cmp_eq_u32 s58, 13
    s_cselect_b32 s85, {OOB:#x}, s85
    s_cselect_b32 s81, s80, s81
    s_lshr_b32 s56, s56, 1
    s_lshl_b32 s56, s56, 7
    s_lshl_b32 s57, s58, 3
    s_add_u32 s56, s56, s57
    s_and_b32 s57, s3, 1
    s_lshl_b32 s57, s57, 2
    s_add_u32 s56, s56, s57
    s_add_u32 s97, s56, {HF}
    s_mul_i32 s67, s3, {16*3456}
    s_lshl_b32 s57, s58, 8
    s_add_u32 s67, s67, s57
    s_lshr_b32 s56, s61, 2
    s_mul_i32 s56, s56, 47
    s_lshr_b32 s56, s56, 5
    s_and_b32 s57, s61, 3
    s_mul_i32 s57, s57, 5
    s_lshr_b32 s57, s57, 1
    s_add_u32 s64, s56, s57
    s_sub_u32 s56, s64, 10
    s_cmp_ge_u32 s64, 10
    s_cselect_b32 s64, s56, s64
    s_mul_i32 s64, s64, {int(opt.get('rot',1))}
    s_lshl_b32 s56, s64, 7
    s_add_u32 s66, s66, s56
    s_sub_u32 s95, s66, 1280
    s_mul_i32 s56, s64, {64*3456}
    s_add_u32 s67, s67, s56
    s_sub_u32 s69, s67, {640*3456}
    s_mul_i32 s86, s34, 20
    s_add_u32 s86, s86, s61
    s_cmp_lt_u32 s61, 20
    s_cselect_b32 s93, 0, 1
    s_cbranch_scc0 L_Nload''')
    p.push()
    p.i('''
    s_lshl_b32 s56, s86, 2
    s_add_u32 s56, s56, s3
    s_lshl_b32 s57, s56, 8
    v_lshl_add_u32 v6, v0, 2, s57
    s_lshl_b32 s57, s56, 1
    v_mov_b32 v7, s57''')
    p.vm('global_load_ushort v38, v7, s[14:15]'); p.vm('global_load_ushort v39, v7, s[16:17]')
    p.vm('global_load_dword v40, v6, s[6:7]'); p.vm('global_load_dword v41, v6, s[8:9]'); p.vm('global_load_dword v42, v6, s[10:11]')
    S.tpar=p.vm('global_load_dword v43, v6, s[12:13]')
    p.i('s_branch L_Gc'); p.pop()
    p.label('L_Nload'); p.push()
    if opt.get('noN'): p.i('s_endpgm')
    p.i(f'''
    s_lshl_b32 s62, s34, 3
    s_add_u32 s62, s62, s61
    s_sub_u32 s62, s62, 20
    s_lshl_b32 s86, s62, 2
    s_add_u32 s86, s86, {W2F}
    s_cmp_lt_u32 s62, 54
    s_cselect_b32 s63, 0, {OOB:#x}
    s_lshl_b32 s56, s62, 2
    s_add_u32 s56, s56, s3
    s_mul_i32 s56, s56, {8*1280}
    s_or_b32 s56, s56, s63
    v_lshrrev_b32 v6, 4, v0
    v_and_b32 v7, 15, v0
    v_lshlrev_b32 v8, 1, v6
    v_xor_b32 v7, v7, v8
    v_mul_u32_u24 v6, 1280, v6
    v_lshl_add_u32 v8, v7, 4, v6
    v_xor_b32 v7, 8, v7
    v_lshl_add_u32 v9, v7, 4, v6
    v_add_u32 v9, {4*1280-1024}, v9''')
    for cb in range(5):
        p.i(f's_add_u32 m0, s65, {STG+cb*2048}\ns_add_u32 s57, s56, {cb*256}')
        p.vm('buffer_load_dwordx4 v8, s[52:55], s57 offen lds')
        S.tw2=p.vm('buffer_load_dwordx4 v9, s[52:55], s57 offen offset:1024 lds')
    p.pop(); p.label('L_Gc')
    p.i(f'''
    v_lshrrev_b32 v6, 3, v0
    v_and_b32 v7, 7, v0
    v_lshrrev_b32 v8, 4, v0
    v_xor_b32 v8, v8, v7
    v_mul_u32_u24 v9, 1280, v6
    v_lshl_add_u32 v10, v8, 4, v9
    v_xor_b32 v8, 4, v8
    v_lshl_add_u32 v11, v8, 4, v9
    v_add_u32 v11, {10240-1024}, v11
    v_add_u32 v12, {2*(10240-1024)}, v10
    v_add_u32 v13, {2*(10240-1024)}, v11
    v_bfe_u32 v8, v0, 4, 1
    v_lshlrev_b32 v8, 2, v8
    v_xor_b32 v8, v8, v7
    v_mul_u32_u24 v9, 3456, v6
    v_lshl_add_u32 v14, v8, 4, v9
    v_add_u32 v15, {8*3456-1024}, v14''')
    for f in events(S,SEQ_INIT): f(p)
    p.i(f'''
    v_and_b32 v6, 31, v0
    v_lshrrev_b32 v7, 5, v0
    v_bfe_u32 v8, v0, 1, 3
    v_xor_b32 v8, v8, v7
    v_lshlrev_b32 v9, 7, v6
    v_add_u32 v9, s65, v9''')
    for i in range(4): p.i(f'v_xor_b32 v20, {2*i}, v8\nv_lshl_add_u32 v{16+i}, v20, 4, v9')
    p.i(f'''
    v_lshlrev_b32 v4, 4, v6
    v_lshl_add_u32 v5, v7, 31, v4
    v_bfe_u32 v8, v0, 4, 1
    v_mul_u32_u24 v3, 55296, v8
    v_lshl_add_u32 v3, v7, 8, v3
    v_and_b32 v6, 15, v0
    v_lshl_add_u32 v3, v6, 4, v3
    s_add_u32 s56, s65, {STG}
    v_lshl_add_u32 v8, v0, 3, s56
    v_mul_u32_u24 v9, 544, v6
    v_lshrrev_b32 v6, 4, v0
    v_lshl_add_u32 v9, v6, 4, v9
    v_add_u32 v9, s56, v9
    s_cmp_eq_u32 s93, 0
    s_cbranch_scc0 L_Npack''')
    ND=5
    p.push()
    if opt.get('noev'): spread(p,kgen(S,p),[],0.02,0.99)
    elif opt.get('nokg'): spread(p,[o for o in kgen(S,p) if 'memtime' in o.text or o.kind=='wvm'],events(S,SEQ_K),0.02,0.99)
    else: spread(p,kgen(S,p),events(S,SEQ_K),0.02,0.99)

    p.stamp('k4')
    nonce(p)
    p.i('s_branch L_Gm'); p.pop()
    p.label('L_Npack'); p.push()
    ev=events(S,SEQ_K); n0=int(opt.get('npk',12))
    for e in ev[:n0]: e(p)
    spread(p,pack(p,S),ev[n0:n0+12],0.3,1.0)
    for e in ev[n0+12:]: e(p)
    nonce(p)
    p.wvm(S.tpk); p.i('s_barrier')
    with W0(p): set_flag(p,'s86',6)
    p.pop(); p.label('L_Gm')
    p.stamp('a')
    if opt.get('stop')=='K':
        p.i(f's_lshl_b32 s56, s86, 2\ns_add_u32 s56, s56, s3\ns_lshl_b32 s56, s56, 12\ns_add_u32 s56, s56, {YB}\ns_cmp_eq_u32 s93, 0\ns_cselect_b32 s56, s56, {OOB:#x}')
        for t in range(3): p.vm(f'buffer_store_dwordx4 v[{26+4*t}:{29+4*t}], v1, s[44:47], s56 offen offset:{1024*t}')
        p.wvm0(); p.i('s_branch L_fin'); p.label('L_noconv'); return
    p.i(f'''
    v_bfe_u32 v6, v0, 2, 2
    v_lshrrev_b32 v7, 5, v0
    v_lshl_add_u32 v7, v7, 3, v6
    v_lshlrev_b32 v7, 7, v7
    v_bfe_u32 v20, v0, 4, 1
    v_lshl_add_u32 v7, v20, 5, v7
    v_and_b32 v20, 3, v0
    v_lshl_add_u32 v7, v20, 3, v7
    v_bfe_u32 v6, v0, 3, 1
    v_lshl_add_u32 v56, v6, 6, v7
    v_xor_b32 v57, 64, v56''')
    for i in range(1,4): p.i(f'v_add_u32 v{56+2*i}, {40960*i}, v56\nv_add_u32 v{57+2*i}, {40960*i}, v57')
    w2p_setup(p)
    gemm1(p,S,ND)
    if opt.get('stop')=='H':
        p.wvm0(); p.i('s_branch L_fin'); p.label('L_noconv'); return
    import gen_c
    gen_c.conv(p,S); gen_c.gemm2(p,S)

def gemm1(p,S,ND):
    opt=p.opt
    ACC=lambda h,mt: 64+32*h+16*mt
    FB=lambda n,mt: 128+8*(n%3)+4*mt
    ft={}
    def rd(q,n,mt):
        h,r=divmod(n,40); j,i=divmod(r,4); u=BU[10*h+j]*2048; b=FB(n,mt)
        q.ds(f'ds_read_b64_tr_b16 v[{b}:{b+1}], v{56+2*i+mt} offset:{u}')
        ft[n,mt]=q.ds(f'ds_read_b64_tr_b16 v[{b+2}:{b+3}], v{56+2*i+mt} offset:{u+512}')
    SYNC={0:'b2',3:'b5',6:'b7',8:'b9',13:'b15',16:'b19'}
    def sync(q,g):
        q.wvm(S.tok.setdefault(SYNC[g],Tok(SYNC[g]))); q.i('s_barrier')
    sync(p,0)
    for n in (0,1):
        for mt in (0,1): rd(p,n,mt)
    groups=[]
    for n in range(80):
        h,r=divmod(n,40); j,i=divmod(r,4)
        for mt in (0,1):
            q=Sub()
            if mt==0:
                if h==0 and i==0 and j>=ND: q.wds(S.dtok.setdefault(j,Tok(f'd{j}')))
                q.wds(ft[n,0])
            else: q.wds(ft[n,1])
            a=ACC(h,mt); x=16*j+4*i
            q.i(f'v_mfma_f32_32x32x16_bf16 v[{a}:{a+15}], v[{FB(n,mt)}:{FB(n,mt)+3}], a[{x}:{x+3}], '+('0' if r==0 else f'v[{a}:{a+15}]'))
            if n+2<80:
                if mt==0 and (n+2)%4==0 and (n+2)//4 in SYNC: sync(q,(n+2)//4)
                rd(q,n+2,mt)
            groups.append(q.ops)
    side={}
    def at(g,fn): side.setdefault(g,[]).append(fn)
    g=0
    for e in SEQ_H:
        for f in item(S,e):
            at(g,f); g+= 1 if e[0]=='d' else 2
    assert g<=76, g
    def e0(p): S.te0=ext_load(p,0)
    at(66,e0)
    def c0(p):
        p.poll(S.te0, lambda: ext_load(p,0), lambda: ext_check(p,0))
        p.i(f'''
        v_mul_f32 v172, {f2u(-C_G):#x}, v171
        v_mul_f32 v174, v171, v171
        v_lshlrev_b32 v176, 16, v170
        v_and_b32 v177, 0xffff0000, v170
        v_mul_f32 v174, v174, v172
        v_add_f32 v176, v176, v177
        v_mul_f32 v174, {f2u(0.044715):#x}, v174
        v_mov_b32 v171, 0
        v_mov_b32 v169, v168
        v_mov_b32 v155, 0
        v_mov_b32 v159, 0''')
    at(78,c0)
    def x0(p):
        for mt in (0,1): p.i(f'v_mfma_f32_32x32x16_bf16 v[{ACC(0,mt)}:{ACC(0,mt)+15}], v[{152+4*mt}:{155+4*mt}], v[168:171], v[{ACC(0,mt)}:{ACC(0,mt)+15}]')
        p.stamp('b')
    at(79,x0)
    def f0(p): p.i(f's_mov_b32 s79, {W2F}'); S.tf=w0_load(p,216,'s79')
    at(70,f0)
    def f1(p): w0_poll(p,216,'s79',64,S.tf)
    at(80,f1)
    def e1(p): S.te1=ext_load(p,1)
    at(110,e1)
    def c1(p):
        p.poll(S.te1, lambda: ext_load(p,1), lambda: ext_check(p,1))
        p.i('v_mov_b32 v163, 0\nv_mov_b32 v167, 0')
        for mt in (0,1): p.i(f'v_mfma_f32_32x32x16_bf16 v[{ACC(1,mt)}:{ACC(1,mt)+15}], v[{160+4*mt}:{163+4*mt}], v[168:171], v[{ACC(1,mt)}:{ACC(1,mt)+15}]')
    at(130,c1)
    def g0(p): p.i(f's_lshl_b32 s79, s34, 7\ns_add_u32 s79, s79, {XNF}'); S.tx=w0_load(p,216,'s79')
    at(146,g0)
    k=0
    for g in range(82,160,2):
        n=g//2
        if k<24 or (k-24)<=(n-1-40):
            at(g,lambda p,k=k: w2p_load(p,k)); k+=1
    S.w2next=k
    q=Sub()
    for mt in (0,1):
        gelu_ops(q,ACC(0,mt),200+8*mt,False,180); hstore(q,0,mt,200+8*mt)
    sec=q.ops; k2=0
    bud=float(opt.get('gbud',3.2)); credit=0
    for g,grp in enumerate(groups):
        for o in grp: p.add(o)
        for fn in side.get(g,[]): fn(p)
        if g>=84:
            credit+=bud
            while k2<len(sec) and credit>=sec[k2].cost:
                credit-=sec[k2].cost; p.add(sec[k2]); k2+=1
    p.stamp('c')
    w0_poll(p,216,'s79',32,S.tx)
    p.stamp('c1')
    for o in sec[k2:]: p.add(o)
    p.i('s_cmp_eq_u32 s93, 0\ns_cbranch_scc0 L_nou'); p.push()
    p.i(f's_lshl_b32 s56, s86, 14\ns_lshl_b32 s57, s3, 12\ns_add_u32 s56, s56, s57\ns_add_u32 s56, s56, {XNT}')
    for m in range(4): S.tu=p.vm(f'buffer_load_dwordx4 v[{216+4*m}:{219+4*m}], v1, s[44:47], s56 offen '+(f'offset:{1024*m} ' if m else '')+'sc1')
    p.pop(); p.label('L_nou')
    q=Sub()
    for mt in (0,1):
        gelu_ops(q,ACC(1,mt),200+8*mt,True,180); th=hstore(q,1,mt,200+8*mt)
    nr=int(opt.get('nw2g',6))
    rest=[lambda p,k=k: w2p_load(p,k) for k in range(S.w2next,S.w2next+nr)]
    S.w2next+=nr
    spread(p,q.ops,rest,0.0,0.9)
    S.th=th
    p.stamp('d')
    if opt.get('stop')=='H':
        p.wvm(th); set_flag(p,'s97',6)
```

```python
import sys, struct, math
from asmgen import *

NAME='parallel_sum__ssm_conv_s4d__mixer_channel_mlp__prompt_kernel'
EPO=0; W2F=256; XNF=1024; HF=2048; YF=0x18000; STAT=32768; AEXT=65536; XNT=0x20000; YB=0x2A0000; W2P=0x520000; HP=0x740000; WSZ=0xE00000
STAMP=0xE00000
OOB=0x80000000
TAG=0x3F803F80
def f2u(x): return struct.unpack('<I',struct.pack('<f',x))[0]
LOG2E=f2u(1.4426950408889634); INV2PI=f2u(1/(2*math.pi)); EPS=f2u(1e-5)
SPIN=200000
SP=[70,72,74,98,100,18,4,6,8,10,12,14,16,20,24,28,32]

class G(Prog):
    def __init__(s, opt):
        super().__init__(); s.opt=opt; s.nl=0; s.nstamp=0
    def lab(s,p='L'):
        s.nl+=1; return f'{p}_{s.nl}'
    def stamp(s, name, q=None):
        st=s.opt.get('stamps')
        if not st: return
        l=str(st).split(',')
        if name not in l: return
        r=SP[l.index(name)]
        (q or s).i(f's_memtime s[{r}:{r+1}]')
    def poll(s, tok, reload_fn, check_fn, sleep=2):
        ok=s.lab('Lok'); lp=s.lab('Lsp')
        s.wvm(tok); check_fn(); s.i(f's_cbranch_scc1 {ok}')
        s.push()
        s.i(f's_mov_b32 s96, 0'); s.label(lp)
        s.i(f's_sleep {sleep}'); reload_fn(); s.wvm0(); check_fn()
        s.i(f's_cbranch_scc1 {ok}')
        s.i(f's_add_u32 s96, s96, 1\ns_cmp_lt_u32 s96, {SPIN}\ns_cbranch_scc1 {lp}')
        s.pop(); s.label(ok)

def bf16r(p, dst, src):
    p.i(f'v_cvt_pk_bf16_f32 {dst}, {src}, {src}\nv_and_b32 {dst}, 0xffff0000, {dst}')

def xreduce(p, regs_, tmp, steps):
    for st in steps:
        for k,r in enumerate(regs_):
            t=tmp[k%len(tmp)]
            if st==8: p.i(f'v_add_f32_dpp v{r}, v{r}, v{r} row_ror:8 row_mask:0xf bank_mask:0xf')
            else:
                p.i(f'v_mov_b32 v{t}, v{r}'); p.i(f'v_permlane{st}_swap_b32 v{r}, v{t}'); p.i(f'v_add_f32 v{r}, v{r}, v{t}')

def prologue(p):
    p.i(f'''
    s_load_dwordx16 s[4:19], s[0:1], 0
    s_load_dwordx8 s[20:27], s[0:1], 64
    s_load_dwordx4 s[28:31], s[0:1], 96
    s_load_dwordx2 s[32:33], s[0:1], 112
    s_cmp_lt_u32 s2, 256
    s_cbranch_scc1 L_go
    s_endpgm''')
    p.label('L_go')
    if p.opt.get('stamps'): p.i('s_memrealtime s[94:95]\ns_memtime s[68:69]')
    p.i(f'''
    s_getpc_b64 s[56:57]
    v_lshrrev_b32 v1, 6, v0
    v_and_b32 v0, 63, v0
    s_lshr_b32 s35, s2, 3
    v_readfirstlane_b32 s3, v1
    s_and_b32 s34, s2, 7
    s_and_b32 s58, s35, 7
    s_mul_i32 s58, s58, 40
    s_cmp_lg_u32 s3, 3
    s_cbranch_scc1 L_nopf''')
    p.push()
    p.i(f'''
    v_min_u32 v2, 39, v0
    v_add_u32 v2, s58, v2
    v_lshlrev_b32 v2, 7, v2
    v_min_u32 v2, L_codeend-L_go-128, v2
    v_mov_b32 v3, s57
    v_add_co_u32 v2, vcc, s56, v2
    v_addc_co_u32 v3, vcc, 0, v3, vcc''')
    p.vm('global_load_dword v255, v[2:3], off')
    p.pop(); p.label('L_nopf')
    p.wds0()
    def srd(n, lo, size):
        p.i(f's_mov_b32 s{n}, s{lo}\ns_mov_b32 s{n+1}, s{lo+1}\ns_mov_b32 s{n+2}, {size}\ns_mov_b32 s{n+3}, 0x20000')
    srd(36,4,2048*1280); srd(40,20,640*3456); srd(44,32,WSZ+(0x100000 if p.opt.get('stamps') else 0)); srd(48,28,2048*1280); srd(52,24,1728*1280)
    p.i('v_mov_b32 v254, 0'); p.tepo=p.vm('buffer_load_dword v254, v254, s[44:47], 0 offen sc1')
    p.i(f'''
    s_and_b32 s87, s35, 3
    s_lshl_b32 s58, s34, 2
    s_add_u32 s59, s87, s58
    s_lshr_b32 s58, s35, 2
    s_add_u32 s56, s87, s58
    s_add_u32 s57, s56, 1
    s_and_b32 s57, s57, 3
    s_add_u32 s56, s56, 2
    s_and_b32 s56, s56, 3
    s_add_u32 s56, s56, 4
    s_cmp_lt_u32 s58, 3
    s_cselect_b32 s60, s57, s56
    s_sub_u32 s57, s35, 24
    s_cmp_ge_u32 s35, 24
    s_cselect_b32 s60, s57, s60
    v_lshlrev_b32 v1, 4, v0
    s_cmp_lt_u32 s35, 4
    s_cbranch_scc0 L_G''')

def nonce(p):
    p.wvm(p.tepo)
    p.i('v_readfirstlane_b32 s76, v254\ns_mul_i32 s76, s76, 0x19660d\ns_add_u32 s76, s76, 0x3c6ef35f')
def check_all(p, v, n):
    p.i(f'v_cmp_eq_u32 vcc, s76, v{v}')
    if n<64:
        m=((1<<64)-1)^((1<<n)-1)
        if m&0xffffffff: p.i(f's_or_b32 vcc_lo, vcc_lo, {m&0xffffffff:#x}')
        p.i(f's_or_b32 vcc_hi, vcc_hi, {m>>32:#x}')
    p.i('s_cmp_eq_u64 vcc, -1')
def flags1_load(p, v, soff):
    p.i(f'v_lshlrev_b32 v{v}, 2, v0'); return p.vm(f'buffer_load_dword v{v}, v{v}, s[44:47], {soff} offen sc1')
def set_flag(p, soff, v, reps=1, stride=0):
    p.i(f'v_mov_b32 v{v}, s76\nv_mul_u32_u24 v{v+1}, {stride}, v0\ns_mov_b64 exec, {(1<<reps)-1}')
    p.vm(f'buffer_store_dword v{v}, v{v+1}, s[44:47], {soff} offen sc1')
    p.i('s_mov_b64 exec, -1')
class W0:
    def __init__(s,p): s.p=p
    def __enter__(s):
        s.l=s.p.lab('Lw0'); s.p.i(f's_cmp_lg_u32 s3, 0\ns_cbranch_scc1 {s.l}'); s.p.push()
    def __exit__(s,*a): s.p.pop(); s.p.label(s.l)
def w0_load(p, v, soff):
    with W0(p): t=flags1_load(p,v,soff)
    return t
def w0_poll(p, v, soff, n, tok=None, sleep=2):
    with W0(p):
        if tok is None: tok=flags1_load(p,v,soff)
        p.poll(tok, lambda: flags1_load(p,v,soff), lambda: check_all(p,v,n), sleep)
    p.i('s_barrier')

def fpath(p):
    p.push()
    if p.opt.get('noF'): p.i('s_endpgm')
    p.i(f'''
    s_lshl_b32 s61, s34, 2
    s_add_u32 s61, s61, s35
    s_and_b32 s56, s34, 1
    s_lshr_b32 s57, s34, 1
    s_lshl_b32 s57, s57, 2
    s_add_u32 s57, s57, s35
    s_mul_i32 s62, s56, 14
    s_add_u32 s62, s62, s57
    s_sub_u32 s56, 14, s56
    s_cmp_lt_u32 s57, s56
    s_cselect_b32 s62, s62, 0
    s_cselect_b32 s63, 0, {OOB:#x}''')
    p.i(f'''
    s_and_b32 s64, s3, 1
    s_lshl_b32 s64, s64, 2
    v_lshrrev_b32 v2, 4, v0
    v_and_b32 v3, 15, v0
    v_xor_b32 v8, v3, v2
    v_xor_b32 v8, s64, v8
    v_mul_u32_u24 v9, 1280, v2''')
    for rg in range(4):
        p.i(f'v_xor_b32 v14, {4*rg}, v8\nv_lshl_add_u32 v14, v14, 4, v9\nv_add_u32 v{10+rg}, {4*rg*1280}, v14')
    p.i(f'''
    s_lshl_b32 s56, s61, 2
    s_add_u32 s56, s56, s3
    s_mul_i32 s56, s56, {16*1280}
    s_mul_i32 s65, s3, 20480''')
    tx={}
    for cb in range(5):
        for rg in range(4):
            p.i(f's_add_u32 m0, s65, {cb*4096+rg*1024}')
            if rg==0: p.i(f's_add_u32 s57, s56, {cb*256}')
            tx[cb,rg]=p.vm(f'buffer_load_dwordx4 v{10+rg}, s[36:39], s57 offen lds')
    p.i(f'''
    v_lshrrev_b32 v14, 3, v0
    v_and_b32 v15, 7, v0
    v_mul_u32_u24 v14, 3456, v14
    v_lshl_add_u32 v61, v15, 4, v14
    s_mul_i32 s56, s3, {160*3456}
    s_lshl_b32 s57, s62, 7
    s_add_u32 s56, s56, s57
    s_or_b32 s58, s56, s63''')
    tw=[]
    def w1ld():
        m=len(tw)
        if m<20:
            p.i(f's_add_u32 s57, s58, {m*8*3456}')
            tw.append(p.vm(f'buffer_load_dwordx4 v[{64+4*m}:{67+4*m}], v61, s[40:43], s57 offen'))
    p.i(f's_lshl_b32 s56, s62, 7\nv_lshl_add_u32 v15, v0, 1, s56')
    tb1=p.vm('global_load_ushort v15, v15, s[22:23]')
    p.stamp('f0')
    p.i(f'''
    v_xor_b32 v8, s64, v3
    v_xor_b32 v8, v8, v2
    v_lshlrev_b32 v9, 8, v3
    v_add_u32 v9, s65, v9''')
    for k in range(4):
        p.i(f'v_xor_b32 v14, {4*k}, v8\nv_lshl_add_u32 v{16+k}, v14, 4, v9')
    p.i(f's_mov_b32 s66, {TAG:#x}')
    for k in range(8): p.i(f'v_mov_b32 v{20+k}, 0')
    rd={}
    def rdx(cb):
        p.wvm(tx[cb,3])
        for k in range(4): rd[cb,k]=p.ds(f'ds_read_b128 v[{160+16*(cb%2)+4*k}:{163+16*(cb%2)+4*k}], v{16+k} offset:{cb*4096}')
    rdx(0)
    p.stamp('f1')
    for cb in range(5):
        if cb<4: rdx(cb+1)
        for k in range(4):
            p.wds(rd[cb,k])
            for e in range(4):
                r=160+16*(cb%2)+4*k+e
                p.i(f'v_dot2_f32_bf16 v{20+e}, v{r}, s66, v{20+e}\nv_dot2_f32_bf16 v{24+e}, v{r}, v{r}, v{24+e}')
            if cb>=int(p.opt.get('fw',1)) and (k%2==1 or cb>=2): w1ld()
    p.i('''
    v_add_f32 v20, v20, v21
    v_add_f32 v22, v22, v23
    v_add_f32 v24, v24, v25
    v_add_f32 v26, v26, v27
    v_add_f32 v20, v20, v22
    v_add_f32 v21, v24, v26''')
    p.stamp('f2')
    xreduce(p,[20,21],[22,23],[16,32])
    p.i(f'''
    v_mul_f32 v20, {f2u(1/640):#x}, v20
    v_mul_f32 v21, {f2u(1/640):#x}, v21
    v_fma_f32 v21, -v20, v20, v21
    v_max_f32 v21, 0, v21''')
    w1ld()
    bf16r(p,'v22','v20')
    bf16r(p,'v23','v21')
    p.i(f'v_add_f32 v23, {EPS:#x}, v23'); bf16r(p,'v23','v23')
    w1ld()
    p.i('v_sqrt_f32 v23, v23'); bf16r(p,'v23','v23')
    p.i('''
    v_rcp_f32 v24, v23
    v_sub_f32 v25, v20, v22
    v_mul_f32 v25, v25, v24
    v_mul_f32 v26, v21, v24
    v_mul_f32 v26, v26, v24
    v_mul_f32 v27, v22, v24
    v_sub_f32 v27, 0, v27''')
    w1ld()
    bf16r(p,'v25','v25'); bf16r(p,'v26','v26')
    p.i(f'v_add_f32 v26, {EPS:#x}, v26'); bf16r(p,'v26','v26')
    p.i('v_sqrt_f32 v26, v26'); bf16r(p,'v26','v26')
    p.i('''
    v_mul_f32 v26, v26, v23
    v_fma_f32 v25, v25, v23, v22
    v_rcp_f32 v31, v26''')
    bf16r(p,'v22','v25'); nonce(p); p.i('v_sub_f32 v25, v25, v22\nv_cvt_pk_bf16_f32 v28, -v22, -v25\nv_mov_b32 v29, s76')
    bf16r(p,'v22','v26'); p.i('v_sub_f32 v26, v26, v22\nv_cvt_pk_bf16_f32 v30, v22, v26')
    while len(tw)<20: w1ld()
    T1=81920; T2=81920+1024
    p.i(f'''
    s_lshl_b32 s56, s61, 2
    s_add_u32 s56, s56, s3
    s_lshl_b32 s56, s56, 8
    s_add_u32 s56, s56, {STAT}
    s_lshl_b32 s57, s3, 6
    v_lshl_add_u32 v22, v0, 2, s57
    s_mov_b64 exec, 0xffff''')
    p.vm('buffer_store_dwordx4 v[28:31], v1, s[44:47], s56 offen sc1')
    p.i(f'v_add_u32 v22, {T1}, v22')
    p.ds('ds_write_b32 v22, v24'); p.ds('ds_write_b32 v22, v27 offset:256')
    p.i('s_mov_b64 exec, -1')
    p.stamp('a')
    p.i('s_mov_b32 s66, 0x3f80\ns_mov_b32 s67, 0x3f800000')
    for m in range(20):
        if m%2==0: p.wvm(tw[min(m+1,19)])
        for e in range(4):
            r=64+4*m+e
            c0='0' if m==0 else f'v{32+2*e}'; c1='0' if m==0 else f'v{33+2*e}'
            p.i(f'v_dot2_f32_bf16 v{32+2*e}, v{r}, s66, {c0}\nv_dot2_f32_bf16 v{33+2*e}, v{r}, s67, {c1}')
    xreduce(p,list(range(32,40)),[40,41,42,43],[8,16,32])
    p.i(f'''
    s_lshl_b32 s57, s3, 8
    s_add_u32 s57, s57, {T2}
    v_lshl_add_u32 v22, v0, 5, s57
    s_mov_b64 exec, 0xff''')
    p.ds('ds_write_b128 v22, v[32:35]'); p.ds('ds_write_b128 v22, v[36:39] offset:16')
    p.i('s_mov_b64 exec, -1'); p.wds0(); p.i('s_barrier')
    p.i(f'''
    v_lshlrev_b32 v22, 2, v0
    v_add_u32 v22, {T2}, v22
    v_bfe_u32 v23, v0, 2, 3
    v_lshlrev_b32 v23, 5, v23
    v_add_u32 v23, {T1}, v23''')
    tt=[p.ds(f'ds_read_b32 v{32+k}, v22 offset:{256*k}') for k in range(4)]
    for k in range(2): p.ds(f'ds_read_b128 v[{44+4*k}:{47+4*k}], v23 offset:{16*k}')
    for k in range(2): tl=p.ds(f'ds_read_b128 v[{52+4*k}:{55+4*k}], v23 offset:{256+16*k}')
    p.wds(tt[3])
    p.i('v_add_f32 v32, v32, v33\nv_add_f32 v34, v34, v35\nv_add_f32 v32, v32, v34')
    p.i('v_cvt_pk_bf16_f32 v36, v32, v32\nv_and_b32 v33, 0xffff0000, v36\nv_sub_f32 v33, v32, v33\nv_cvt_pk_bf16_f32 v37, v33, v33')
    p.wvm(tb1)
    p.i(f'''
    v_lshl_add_u32 v38, v15, 16, v15
    v_mov_b32 v39, s76
    s_lshl_b32 s56, s62, 10
    s_add_u32 s56, s56, {AEXT}
    s_or_b32 s56, s56, s63
    s_cmp_eq_u32 s3, 0
    s_cselect_b32 s56, s56, {OOB:#x}''')
    p.vm('buffer_store_dwordx4 v[36:39], v1, s[44:47], s56 offen sc1')
    p.stamp('b')
    p.i(f'''
    v_bfe_u32 v8, v0, 2, 2
    v_and_b32 v9, 1, v0
    v_lshl_add_u32 v8, v9, 3, v8
    v_bfe_u32 v9, v0, 4, 1
    v_bfe_u32 v22, v0, 1, 1
    v_lshl_add_u32 v9, v9, 1, v22
    v_lshlrev_b32 v14, 2, v22
    v_xor_b32 v14, v14, v8
    v_xor_b32 v14, s3, v14
    v_mul_u32_u24 v9, 20480, v9
    v_lshl_add_u32 v9, v8, 8, v9
    v_lshrrev_b32 v22, 5, v0
    v_lshl_add_u32 v9, v22, 3, v9
    v_and_b32 v23, 31, v0
    v_lshlrev_b32 v23, 4, v23
    v_lshl_add_u32 v23, v22, 14, v23
    s_lshl_b32 s56, s3, 15
    s_lshl_b32 s57, s61, 9
    s_add_u32 s56, s56, s57
    s_add_u32 s56, s56, {XNT}''')
    for k in range(4): p.i(f'v_xor_b32 v22, {4*k}, v14\nv_lshl_add_u32 v{16+k}, v22, 4, v9')
    tn={}
    def nrd(t):
        b=160+4*(t%4)
        p.ds(f'ds_read_b64_tr_b16 v[{b}:{b+1}], v{16+(t&3)} offset:{(t>>2)*4096}')
        tn[t]=p.ds(f'ds_read_b64_tr_b16 v[{b+2}:{b+3}], v{16+((t&3)^1)} offset:{(t>>2)*4096+1024}')
    for t in range(3): nrd(t)
    p.wds(tl)
    for t in range(20):
        if t+3<20: nrd(t+3)
        b=160+4*(t%4); o=184+4*(t%2)
        p.wds(tn[t])
        for k in range(4):
            p.i(f'v_lshlrev_b32 v{176+2*k}, 16, v{b+k}\nv_and_b32 v{177+2*k}, 0xffff0000, v{b+k}')
        for k in range(4):
            p.i(f'v_pk_fma_f32 v[{176+2*k}:{177+2*k}], v[{176+2*k}:{177+2*k}], v[{44+2*k}:{45+2*k}], v[{52+2*k}:{53+2*k}]')
        for k in range(4): p.i(f'v_cvt_pk_bf16_f32 v{o+k}, v{176+2*k}, v{177+2*k}')
        p.i(f's_add_u32 s57, s56, {t*8*16384}')
        txn=p.vm(f'buffer_store_dwordx4 v[{o}:{o+3}], v23, s[44:47], s57 offen sc1')
    p.i(f's_lshl_b32 s58, s61, 2\ns_add_u32 s58, s58, {XNF}')
    p.wvm(txn); p.i('s_barrier')
    with W0(p): set_flag(p,'s58',60,8,128)
    p.stamp('d')
    if p.opt.get('stop')=='F':
        p.i('s_branch L_fin')
    else:
        if p.opt.get('stop')=='K': p.i('s_branch L_fin')
        p.i(f's_mov_b32 s79, {W2F}'); w0_poll(p,60,'s79',64)
        w2p_setup(p)
        for k in range(70): w2p_load(p,k)
        p.i('s_mov_b32 s86, 0')
        p.i('s_branch L_noconv')
    p.pop()

def w2reg(it,m):
    k=W2ORD.index(it)*5+m
    if k<24: return f'a[{160+4*k}:{163+4*k}]'
    if k<64: return f'a[{4*(k-24)}:{4*(k-24)+3}]'
    return f'v[{232+4*(k-64)}:{235+4*(k-64)}]'
W2ORD=[0,4,12,13,1,2,3,8,5,6,7,9,10,11]
def step_bases(p, base, stride):
    p.i(f'''
    s_add_u32 s78, s90, {12*stride}
    s_add_u32 s77, s90, {13*stride}
    s_cmp_lt_u32 s3, 2
    s_cselect_b32 s77, s77, {OOB:#x}
    s_mov_b32 s92, s90''')
    for i in range(4):
        p.i(f's_add_u32 s56, s87, {i}\ns_and_b32 s56, s56, 3\ns_mul_i32 s56, s56, {stride}\ns_add_u32 s{88+i}, s92, s56')
def step_soff(p, it, stride, first):
    if it==12: return 's78'
    if it==13: return 's77'
    if it<4: return f's{88+it}'
    if first: p.i(f's_add_u32 s92, s{88+it%4}, {(it//4)*4*stride}')
    return 's92'
def w2p_setup(p):
    p.i(f'''
    s_mul_i32 s90, s60, 276480
    s_mul_i32 s91, s3, 5120
    s_add_u32 s90, s90, s91
    s_add_u32 s90, s90, {W2P}
    v_add_u32 v2, 0x1000, v1''')
    step_bases(p,'s90',20480)
def w2p_load(p,k,first=False):
    it=W2ORD[k//5]; m=k%5
    so=step_soff(p,it,20480,m==0 or first)
    return p.vm(f'buffer_load_dwordx4 {w2reg(it,m)}, v{2 if m==4 else 1}, s[44:47], {so} offen '+(f'offset:{m*1024} ' if 0<m<4 else '')+'sc1')

def finish(p):
    p.label('L_fin')
    if p.opt.get('stamps'):
        p.wvm0()
        p.i('s_memtime s[62:63]\ns_memrealtime s[96:97]'); p.wds0()
        src=[f's{r}' for r in SP]+['s62']
        p.i(f's_lshl_b32 s56, s2, 2\ns_add_u32 s56, s56, s3\ns_lshl_b32 s56, s56, 7\ns_add_u32 s56, s56, {STAMP}\nv_mov_b32 v9, 0\ns_mov_b64 exec, 1')
        for q in range(5):
            for e in range(4):
                k=4*q+e
                if k<18: p.i(f's_sub_u32 s57, {src[k]}, s68\nv_mov_b32 v{4+e}, s57')
                else: p.i(f'v_mov_b32 v{4+e}, s{94 if k==18 else 96}')
            p.vm(f'buffer_store_dwordx4 v[4:7], v9, s[44:47], s56 offen offset:{16*q}')
            p.i('s_nop 1')
    p.i('s_endpgm')
    p.label('L_codeend')

def build(opt):
    import gen_g
    p=G(opt)
    prologue(p)
    fpath(p)
    p.label('L_G')
    gen_g.gpath(p)
    finish(p)
    ops=resolve_waits(p.ops)
    ops,npad=hazards(ops, opt.get('verbose'))
    ops,size,mis,pads=align8(ops)
    print(f'; hazard nops {npad}, code {size} B, misaligned8 {mis}, align pads {pads}', file=sys.stderr)
    hdr=open('parallel_sum__ssm_conv_s4d__mixer_channel_mlp__prompt.s.ref').read().split('; Override')[0]
    s=hdr+f'''; @launch grid=(256,1,1) block=(256,1,1) lds=163840
.amdgcn_target "amdgcn-amd-amdhsa--gfx950"
.text
.globl {NAME}
.p2align 8
.type {NAME},@function
{NAME}:
'''+render(ops)+f'''.section .rodata,"a"
.p2align 6
.amdhsa_kernel {NAME}
  .amdhsa_next_free_vgpr 512
  .amdhsa_next_free_sgpr 102
  .amdhsa_accum_offset 256
  .amdhsa_group_segment_fixed_size 0
  .amdhsa_kernarg_size 120
  .amdhsa_user_sgpr_count 2
  .amdhsa_user_sgpr_kernarg_segment_ptr 1
  .amdhsa_system_sgpr_workgroup_id_x 1
.end_amdhsa_kernel
'''
    return s

if __name__=='__main__':
    opt={}
    out=sys.argv[1]
    for a in sys.argv[2:]:
        k,_,v=a.partition('='); opt[k]=v if v else True
    open(out,'w').write(build(opt))
```

```python
from gen import *
from gen_g import spread
UO=0; K0=4736; K1=8896; TB=13056
YST=16384; XST=29696; OST=32768; BST=36864

def expand(q):
    q.i(f'''
    v_cmp_eq_u32 s[98:99], 0, v0
    v_and_b32 v40, 15, v0
    v_lshrrev_b32 v41, 4, v0
    v_cndmask_b32 v42, 0, v39, s[98:99]
    v_add_f32 v26, v26, v42
    s_add_u32 s56, s65, {TB}
    v_lshrrev_b32 v42, 5, v0
    v_bfe_u32 v43, v0, 4, 1
    v_lshlrev_b32 v44, 4, v40
    v_lshl_add_u32 v44, v42, 8, v44
    v_lshl_add_u32 v44, v43, 3, v44
    v_add_u32 v44, s56, v44
    v_lshlrev_b32 v45, 3, v40
    v_lshl_add_u32 v45, v43, 7, v45
    v_lshlrev_b32 v46, 2, v40
    v_lshl_add_u32 v46, v43, 7, v46
    v_add_u32 v46, {784-528}, v46
    v_cmp_gt_u32 s[98:99], 32, v0
    v_mov_b32 v47, 60
    v_cndmask_b32 v45, v46, v45, s[98:99]
    v_cndmask_b32 v47, v47, 0, s[98:99]
    v_add_u32 v45, s56, v45
    v_lshlrev_b32 v46, 1, v40
    v_lshl_add_u32 v46, v41, 7, v46
    v_add_u32 v46, s56, v46
    v_add_u32 v47, v47, v45
    v_mov_b32 v48, 0
    v_mov_b32 v49, 0
    v_mov_b32 v50, 0
    v_mov_b32 v51, 0''')
    for t in range(3):
        q.i(f'v_cvt_pk_bf16_f32 v{52+2*t}, v{26+4*t}, v{27+4*t}\nv_cvt_pk_bf16_f32 v{53+2*t}, v{28+4*t}, v{29+4*t}')
    q.i(f'v_mov_b32 v58, s56')
    q.ds('ds_write_b128 v58, v[48:51]')
    q.ds('ds_write_b64 v44, v[52:53] offset:16')
    q.ds('ds_write_b32 v45, v54 offset:528'); q.ds('ds_write_b32 v47, v55 offset:532')
    q.i('s_mov_b32 exec_lo, -1\ns_mov_b32 exec_hi, 0')
    q.ds('ds_write_b16 v46, v56 offset:1040'); q.ds('ds_write_b16_d16_hi v46, v56 offset:1072')
    q.ds('ds_write_b16 v46, v57 offset:1104'); q.ds('ds_write_b16_d16_hi v46, v57 offset:1136')
    q.i('s_mov_b32 exec_lo, 0\ns_mov_b32 exec_hi, 1')
    q.ds('ds_write_b16 v46, v56 offset:1040')
    q.i('s_mov_b64 exec, -1')
    q.i(f'''
    v_lshlrev_b32 v44, 4, v0
    v_add_u32 v44, 16, v44
    v_lshlrev_b32 v45, 3, v0
    v_add_u32 v45, {528-256}, v45
    v_cndmask_b32 v44, v45, v44, s[98:99]
    v_add_u32 v44, s56, v44
    v_cmp_ge_u32 s[98:99], 32, v0
    v_add_u32 v45, -2, v44
    v_lshl_add_u32 v46, v0, 2, s56
    v_cndmask_b32 v45, v44, v45, s[98:99]''')
    q.ds('ds_read_b64 v[60:61], v44'); q.ds('ds_read_b64 v[62:63], v44 offset:8'); ta=q.ds('ds_read_u16 v8, v45')
    tb=q.ds('ds_read2_b32 v[10:11], v46 offset0:196 offset1:197')
    q.i('v_add_u32 v47, 0x400, v46')
    tc=q.ds('ds_read2_b32 v[12:13], v47 offset0:4 offset1:5')
    q.i(f'''
    s_add_u32 s57, s65, {K0+255*16}
    v_sub_u32 v44, s57, v1
    v_lshlrev_b32 v45, 5, v0
    s_sub_u32 s57, s57, {128*16+16}
    v_sub_u32 v45, s57, v45
    s_mov_b32 s56, 0x01000302
    s_mov_b32 s57, 0x03020504
    s_mov_b32 s58, 0x01000100
    s_mov_b32 s61, 0x03020302
    s_mov_b32 s62, 0x01000504
    s_mov_b32 s63, 0x05040504''')
    P=lambda d,a,b,s_: q.i(f'v_perm_b32 v{d}, v{a}, v{b}, s{s_}')
    q.wds(ta)
    q.i('s_mov_b32 exec_lo, -1\ns_mov_b32 exec_hi, 0')
    P(168,63,63,56);P(169,62,62,56);P(170,61,61,56);P(171,60,60,56)
    P(172,63,62,57);P(173,62,61,57);P(174,61,60,57);P(175,60,8,62)
    q.i('s_mov_b32 exec_lo, 0\ns_mov_b32 exec_hi, -1')
    P(168,62,61,57);P(169,61,61,58);P(170,61,60,57);P(171,60,60,58)
    P(172,61,61,56);P(173,61,61,58);P(174,60,60,56);P(175,60,8,62)
    q.i('s_mov_b64 exec, -1')
    q.ds('ds_write_b128 v44, v[168:171]'); q.ds(f'ds_write_b128 v44, v[172:175] offset:{K1-K0}')
    q.wds(tb)
    P(204,11,11,58);P(205,10,10,61);P(206,10,10,56);P(207,10,10,58)
    P(208,11,10,57);P(209,10,10,61);P(210,10,10,58);P(211,10,10,58)
    q.i('v_add_u32 v46, -1024, v44')
    q.ds('ds_write_b128 v46, v[204:207]'); q.ds(f'ds_write_b128 v46, v[208:211] offset:{K1-K0}')
    q.wds(tc)
    P(168,12,12,61);P(169,12,12,56);P(170,12,12,58);P(171,12,12,58)
    P(172,12,12,61);P(173,12,12,58);P(174,12,12,58);P(175,12,12,58)
    q.ds('ds_write_b128 v45, v[168:171] offset:16'); q.ds(f'ds_write_b128 v45, v[172:175] offset:{K1-K0+16}')
    P(204,13,13,58);P(205,13,13,58);P(206,12,12,61);P(207,12,12,61)
    P(208,13,13,58);P(209,13,12,57);P(210,12,12,61);P(211,12,12,61)
    q.ds('ds_write_b128 v45, v[204:207]'); q.ds(f'ds_write_b128 v45, v[208:211] offset:{K1-K0}')
    q.i(f'''
    s_lshl_b32 s56, s3, 5
    s_add_u32 s56, s56, s65
    v_add_u32 v44, s56, v1
    v_and_b32 v45, 1, v0
    v_lshlrev_b32 v45, 4, v45
    v_bfe_u32 v46, v0, 1, 1
    v_mul_u32_u24 v46, {K1-K0}, v46
    v_add3_u32 v45, v45, v46, s65
    v_add_u32 v45, {K0+4096}, v45
    v_cmp_gt_u32 s[98:99], 32, v0
    s_nop 1
    v_cndmask_b32 v44, v45, v44, s[98:99]''')
    q.ds('ds_write_b128 v44, v[48:51]')

CA=8; CB=40; CB2=72; CACC=80
HR=112; NHR=30
G2=8
def hreg(it,i,extra=False):
    k=(it*4+i)%NHR
    return HR+4*k

def h_setup(p):
    p.i(f'''
    s_lshl_b32 s56, s59, 2
    s_mul_i32 s90, s56, 55296
    s_lshl_b32 s57, s3, 10
    s_add_u32 s90, s90, s57
    s_add_u32 s90, s90, {HP}
    s_add_u32 s91, s90, {13*4096}
    s_cmp_lt_u32 s3, 2
    s_cselect_b32 s91, s91, {OOB:#x}
    s_lshl_b32 s79, s59, 7
    s_add_u32 s79, s79, {HF}''')
    for i in range(4):
        p.i(f's_add_u32 s56, s3, {1+i}\ns_and_b32 s56, s56, 3\ns_mul_i32 s56, s56, 55296\nv_add_u32 v{4+i}, s56, v1')
def h_load(p,S,it,i,first=False):
    if (i==0 or first) and 0<it<13: p.i(f's_add_u32 s92, s90, {it*4096}')
    so='s90' if it==0 else ('s91' if it==13 else 's92')
    r=hreg(it,i)
    return p.vm(f'buffer_load_dwordx4 v[{r}:{r+3}], v{4+i}, s[44:47], {so} offen sc1', S.ht.setdefault((it,i),Tok(f'h{it},{i}')))
def h_poll(p,tok):
    p.poll(tok, lambda: flags1_load(p,3,'s79'), lambda: check_all(p,3,28))

def ustage(p,q,S):
    q.i(f'''
    v_and_b32 v44, 3, v0
    v_mul_u32_u24 v44, {40960+32}, v44
    v_lshrrev_b32 v45, 2, v0
    v_lshl_add_u32 v44, v45, 4, v44
    s_lshl_b32 s56, s3, 10
    s_add_u32 s56, s56, 512
    v_add_u32 v44, s56, v44''')
    p.stamp('u0',q); q.wvm(S.tu); p.stamp('u1',q)
    for m in range(4): q.ds(f'ds_write_b128 v44, v[{216+4*m}:{219+4*m}] offset:{256*m}')
    q.i(f'''
    v_and_b32 v44, 15, v0
    v_lshrrev_b32 v45, 4, v0
    v_lshlrev_b32 v112, 5, v44
    '''.replace('v112','v18')+f'''
    v_lshl_add_u32 v18, v45, 4, v18
    s_mul_i32 s56, s3, {40960+32}
    v_add_u32 v18, s56, v18
    v_lshrrev_b32 v46, 1, v44
    v_lshlrev_b32 v45, 2, v45
    v_sub_u32 v45, v45, v46
    v_lshlrev_b32 v45, 2, v45
    v_and_b32 v46, 1, v44
    v_xor_b32 v46, 1, v46
    v_mul_u32_u24 v46, {K1-K0}, v46
    v_add3_u32 v45, v45, v46, s65''')
    for g2 in range(4): q.i(f'v_add_u32 v{4+g2}, {K0+4*(1015-128*(2*g2+1)-112)}, v45')


NH2=20; HV=192
XV=196; YV=199; YW=202; XR=203; YR=204; PW=206; PR=207; OW=210; YFV=211; T0=212; YE=214; I0=216; I1=220
def hreg2(it,i): return HR+4*((it*4+i)%NH2)

def setup2(p):
    p.i(f'''
    s_mul_i32 s88, s59, {4*55296}
    s_lshl_b32 s57, s3, 10
    s_add_u32 s88, s88, s57
    s_add_u32 s88, s88, {HP}
    s_add_u32 s89, s88, {13*4096}
    s_lshr_b32 s56, s3, 1
    s_lshl_b32 s56, s56, 31
    s_or_b32 s89, s89, s56
    s_lshl_b32 s79, s59, 7
    s_add_u32 s79, s79, {HF}''')
    for i in range(4):
        p.i(f's_add_u32 s56, s3, {1+i}\ns_and_b32 s56, s56, 3\ns_mul_i32 s56, s56, 55296\nv_add_u32 v{HV+i}, s56, v1')
    p.i(f'''
    s_mov_b32 s56, 0x199a
    s_lshl_b32 s61, s59, 2
    s_add_u32 s61, s61, s3
    s_mul_i32 s61, s61, {16*1280}
    s_mul_i32 s57, s60, 160
    s_add_u32 s61, s61, s57''')
    for t in range(3):
        p.i(f'''
        v_add_u32 v224, {64*t}, v0
        v_mul_u32_u24 v225, s56, v224
        v_lshrrev_b32 v225, 16, v225
        v_mul_u32_u24 v225, {1280-160}, v225
        v_lshl_add_u32 v{XV+t}, v224, 4, v225''')
    p.i(f'''
    v_lshrrev_b32 v224, 5, v0
    v_lshlrev_b32 v224, 31, v224
    v_or_b32 v{XV+2}, v{XV+2}, v224
    v_lshrrev_b32 v225, 3, v0
    v_and_b32 v226, 7, v0
    v_lshlrev_b32 v226, 4, v226
    v_lshl_add_u32 v{YV}, v225, 12, v226
    v_add_u32 v{YV+1}, 0x8000, v{YV}
    v_add_u32 v{YV+2}, 0x10000, v{YV}
    v_or_b32 v{YV+2}, v{YV+2}, v224
    v_mul_u32_u24 v225, 160, v225
    s_mul_i32 s56, s3, {20*160}
    s_add_u32 s56, s56, {YST}
    v_add3_u32 v{YW}, v225, v226, s56
    s_mul_i32 s62, s60, 80
    s_mul_i32 s56, s3, 20
    s_add_u32 s62, s62, s56
    s_lshl_b32 s62, s62, 12
    s_lshl_b32 s56, s59, 7
    s_add_u32 s62, s62, s56
    s_add_u32 s62, s62, {YB}
    s_lshl_b32 s63, s60, 3
    s_add_u32 s63, s63, s34
    s_lshl_b32 s63, s63, 2
    s_add_u32 s63, s63, s3
    s_lshl_b32 s63, s63, 7
    s_add_u32 s63, s63, {YF}
    v_min_u32 v{YFV}, 19, v0
    v_lshlrev_b32 v{YFV}, 2, v{YFV}
    v_and_b32 v224, 15, v0
    v_lshrrev_b32 v225, 4, v0
    v_mul_u32_u24 v226, 160, v224
    v_add_u32 v226, s65, v226
    v_lshl_add_u32 v{XR}, v225, 4, v226
    v_lshl_add_u32 v{OW}, v225, 3, v226
    v_add_u32 v{PW}, s65, v1
    v_bfe_u32 v226, v0, 2, 2
    v_lshl_add_u32 v227, v225, 3, v226
    v_mul_u32_u24 v227, 160, v227
    v_and_b32 v226, 3, v0
    v_lshl_add_u32 v227, v226, 3, v227
    s_lshl_b32 s56, s3, 5
    s_add_u32 s56, s56, {YST}
    v_add_u32 v{YR}, s56, v227
    v_lshrrev_b32 v226, 5, v0
    v_mul_u32_u24 v226, {16*160}, v226
    v_sub_u32 v{YR+1}, v{YR}, v226
    v_and_b32 v226, 1, v225
    v_lshlrev_b32 v226, 3, v226
    v_sub_u32 v224, v224, v226
    v_and_b32 v226, 1, v224
    v_lshlrev_b32 v226, 4, v226
    v_mov_b32 v227, 0x3f80
    v_lshlrev_b32 v227, v226, v227
    v_ashrrev_i32 v224, 1, v224
    v_cmp_gt_u32 s[98:99], 32, v0''')
    for d in range(4):
        p.i(f'v_cmp_eq_u32 s[100:101], {d}, v224\ns_nop 0\nv_cndmask_b32 v226, 0, v227, s[100:101]\nv_cndmask_b32 v{I0+d}, 0, v226, s[98:99]\nv_sub_u32 v{I1+d}, v226, v{I0+d}')
    for i in range(3):
        p.i(f's_sub_u32 s56, s3, {1+i}\ns_and_b32 s56, s56, 3\ns_mul_i32 s56, s56, 40960\ns_add_u32 s56, s56, {5120*i}\nv_add_u32 v{PR+i}, s56, v1')
def xstage(p,S,t):
    p.i(f's_add_u32 m0, s65, {XST+1024*t}')
    p.vm(f'buffer_load_dwordx4 v{XV+t}, s[36:39], s61 offen lds', S.txs if t==2 else None)
def h_load2(p,S,it,i):
    so=step_soff(p,it,4096,i==0,88,89,91)
    r=hreg2(it,i)
    return p.vm(f'buffer_load_dwordx4 v[{r}:{r+3}], v{HV+i}, s[44:47], {so} offen sc1', S.ht.setdefault((it,i),Tok(f'h{it},{i}')))

def conv(p,S):
    opt=p.opt
    S.ht={}; S.txs=Tok('xs')
    NPRE=int(opt.get('npre',16))
    p.i('s_cmp_eq_u32 s93, 0\ns_cbranch_scc0 L_skipconv'); p.push()
    k0=S.w2next
    p.i('v_mov_b32 v3, v18\nv_lshlrev_b32 v72, 16, v25\nv_lshlrev_b32 v73, 16, v25\nv_lshlrev_b32 v74, 16, v25\nv_lshlrev_b32 v75, 16, v25')
    p.wds0(); p.i('s_barrier')
    p.stamp('e')
    ta={};tb={}
    def breg(j,c): return (CB+4*j) if (j>=2 or c%2==0) else CB2+4*j
    def rdA(q,g,c):
        o=128*(1-(g&1))+16*(7-c); r=CA+4*g
        q.ds(f'ds_read2_b32 v[{r}:{r+1}], v{4+g//2} offset0:{o} offset1:{o+1}')
        ta[g,c]=q.ds(f'ds_read2_b32 v[{r+2}:{r+3}], v{4+g//2} offset0:{o+2} offset1:{o+3}')
    def rdB(q,j,c):
        r=breg(j,c); tb[j,c]=q.ds(f'ds_read_b128 v[{r}:{r+3}], v3 offset:{480+512*j-64*c}')
    rdA(p,0,0)
    for j in range(7,-1,-1): rdB(p,j,0)
    groups=[]
    for c in range(8):
        for g in range(8):
            for j in range(7-g,-1,-1):
                q=Sub(); n=g+j; a=CACC+4*n
                if c>0:
                    if g==0 and j==7: q.wds(tb[3,c])
                    if g==0 and j==2: q.wds(tb[2,c])
                    if g==5 and j==2: q.wds(ta[7,c])
                elif g==0 and j in (7,3): q.wds(tb[j-3,0])
                elif g==1 and j==6: q.wds(ta[3,0])
                elif g==4 and j==3: q.wds(ta[7,0])
                q.wds(ta[g,c]); q.wds(tb[j,c])
                q.i(f'v_mfma_f32_16x16x32_bf16 v[{a}:{a+3}], v[{CA+4*g}:{CA+4*g+3}], v[{breg(j,c)}:{breg(j,c)+3}], '+('v[72:75]' if (c==0 and g==0) else f'v[{a}:{a+3}]'))
                if c==0 and g==0 and j>=1: rdA(q,8-j,0)
                if c<7:
                    if j==7-g and j>=2: rdB(q,j,c+1)
                    if j==0: rdA(q,g,c+1)
                    if g==3 and j in (2,3): rdB(q,3-j,c+1)
                groups.append(q.ops)
    side={}
    def at(g,fn): side.setdefault(g,[]).append(fn)
    def hf(p): p.stamp('h0'); p.wvm(S.th); p.stamp('h1'); set_flag(p,'s97',T0)
    at(int(opt.get('ghf',24)),hf)
    stp=float(opt.get('cstep',4.2)); gp=int(opt.get('gpoll',220)); K1=p.K1
    for g in (8,48,72,120,240): at(g,lambda p,g=g: p.stamp(f'c{g}'))
    x=Sub(); setup2(x)
    x.i(f'''
    v_and_b32 v{YE}, 15, v0
    v_lshlrev_b32 v{YE}, 5, v{YE}
    v_bfe_u32 v224, v0, 4, 1
    v_lshl_add_u32 v{YE}, v224, 9, v{YE}
    v_lshrrev_b32 v224, 5, v0
    v_lshl_add_u32 v{YE}, v224, 4, v{YE}
    s_lshl_b32 s56, s86, 2
    s_add_u32 s56, s56, s3
    s_lshl_b32 s81, s56, 12
    s_add_u32 s81, s81, {YB}
    s_mul_i32 s58, s34, 80
    s_sub_u32 s56, s56, s58
    s_mul_i32 s58, s56, 205
    s_lshr_b32 s58, s58, 12
    s_mul_i32 s58, s58, {128-80}
    s_lshl_b32 s56, s56, 2
    s_add_u32 s58, s58, s56
    s_lshl_b32 s56, s34, 12
    s_add_u32 s58, s58, s56
    s_add_u32 s58, s58, {YF}''')
    Q=list(x.ops); gq=int(opt.get('gq',10))
    gl=int(opt.get('glead',40))
    def hs(p): assert not Q; S.tf=w0_load(p,T0,'s79')
    at(gp-gl,hs)
    def hp(p):
        p.stamp('p0'); w0_poll(p,T0,'s79',28,S.tf); p.stamp('p1')
    at(gp,hp)
    g=float(opt.get('cg0',0)); k=k0
    while k<K1 and g<gp:
        at(int(g),lambda p,k=k: w2p_load(p,k,k==k0)); k+=1; g+=stp
    g=max(g,gp)
    rest=[('h',j) for j in range(NPRE)]+[('w',j) for j in range(k,K1)]
    st2=min(stp,(287-g)/len(rest))
    for n,(t,j) in enumerate(rest):
        if t=='h': at(int(g),lambda p,j=j: h_load2(p,S,j//4,j%4))
        else: at(int(g),lambda p,j=j,f=(j==k): w2p_load(p,j,f))
        g+=st2
    for g,grp in enumerate(groups):
        for o in grp: p.add(o)
        for fn in side.get(g,[]): fn(p)
        if g>=gq and g not in side:
            for _ in range(max(0,2-sum(o.kind=='ds' for o in grp))):
                if Q: p.add(Q.pop(0))
    p.stamp('f')
    for n in range(0,8,2):
        o=12+2*n
        for u in range(2):
            a=CACC+4*(n+u); p.i(f'v_cvt_pk_bf16_f32 v{o+2*u}, v{a}, v{a+1}\nv_cvt_pk_bf16_f32 v{o+2*u+1}, v{a+2}, v{a+3}')
        p.i(f'v_permlane16_swap_b32 v{o}, v{o+2}\nv_permlane16_swap_b32 v{o+1}, v{o+3}') if False else None
    for n in range(0,8,2):
        o=12+2*n
        p.i(f'v_permlane16_swap_b32 v{o}, v{o+2}\nv_permlane16_swap_b32 v{o+1}, v{o+3}')
        S.ty=p.vm(f'buffer_store_dwordx4 v[{o}:{o+3}], v{YE}, s[44:47], s81 offen '+(f'offset:{512*n} ' if n else '')+'sc1')
    p.i('s_nop 1\ns_branch L_g2'); p.pop()
    p.label('L_skipconv'); p.push()
    setup2(p)
    p.stamp('h0'); p.wvm(S.th); p.stamp('h1'); set_flag(p,'s97',T0)
    KN=min(p.K1,S.w2next+int(opt.get('kn',26)))
    for k in range(S.w2next,KN): w2p_load(p,k,k==S.w2next)
    p.stamp('p0'); w0_poll(p,T0,'s79',28,None,6); p.stamp('p1')
    k=KN
    for j in range(NPRE):
        h_load2(p,S,j//4,j%4)
        if j>=4 and k<p.K1: w2p_load(p,k,k==KN); k+=1
    while k<p.K1: w2p_load(p,k,k==KN); k+=1
    p.i('s_branch L_g2')
    p.pop()
    p.label('L_noconv'); p.push()
    p.i('s_mov_b32 s93, 1\ns_mul_i32 s65, s3, 40960')
    setup2(p)
    p.stamp('p0'); w0_poll(p,T0,'s79',28,None,6); p.stamp('p1')
    for k in range(NPRE): h_load2(p,S,k//4,k%4)
    p.pop()
    p.label('L_g2')
    S.hnext=NPRE

def yfl(p): return p.vm(f'buffer_load_dword v{T0}, v{YFV}, s[44:47], s63 offen sc1')
def gemm2(p,S):
    opt=p.opt
    if opt.get('stop')=='Y':
        p.i('s_cmp_eq_u32 s93, 0\ns_cbranch_scc0 L_fin'); p.wvm0(); set_flag(p,'s58',T0,8,512); p.wvm0(); return
    p.stamp('g')
    acc=lambda i,m: G2+20*i+4*m
    NT=int(opt.get('nt',3)); N0=14-NT; G0=20*N0; K1=p.K1
    order=[(it,i) for it in range(N0) for i in range(4)]+[(it,i) for i in range(4) for it in range(N0,14)]
    groups=[]
    ht=lambda it,i: S.ht.setdefault((it,i),Tok(f'h{it},{i}'))
    wt=lambda k: p.w2t.setdefault(k,Tok(f'w2_{k}'))
    for (it,i) in order:
        for m in range(5):
            q=Sub()
            if m==0 and it<N0 and i==0: q.wvm(wt(5*it+4))
            if m==0 and it<N0 and i%2==0: q.wvm(ht(it,i+1))
            if m==0 and it==N0:
                if i==0: q.wvm(wt(69))
                q.wvm(ht(13,i))
            a=acc(i,m); r=hreg2(it,i)
            q.i(f'v_mfma_f32_16x16x32_bf16 v[{a}:{a+3}], {w2reg(it,m)}, v[{r}:{r+3}], '+('0' if it==0 else f'v[{a}:{a+3}]'))
            groups.append(q.ops)
    side={}
    def at(g,fn): side.setdefault(g,[]).append(fn)
    L=sorted([(k//5,0,k) for k in range(K1,70)]+[(k//4,1,k) for k in range(S.hnext,56)])
    g=0.0; st=float(opt.get('gstep',4.0))
    while L:
        c=[e for e in L if e[1]==0 or e[2]<NH2 or 5*(e[2]-NH2)+4<=g]
        if not c or (c[0]!=L[0] and c[0][0]>L[0][0]+4): g+=1; continue
        e=c[0]; L.remove(e)
        if e[1]: at(int(g),lambda p,k=e[2]: h_load2(p,S,k//4,k%4))
        else: at(int(g),lambda p,k=e[2]: w2p_load(p,k,k==K1))
        assert g<min(20*e[0],G0)-8, (e,g)
        g+=st
    glast=int(g)
    def yf(p):
        l=p.lab('Lyf'); p.i(f's_cmp_eq_u32 s93, 0\ns_cbranch_scc0 {l}'); p.push(); p.wvm(S.ty); set_flag(p,'s58',T0,8,512); p.pop(); p.label(l)
    at(int(opt.get('gyf',30)),yf)
    for gg in (20,60,120,200,240): at(gg-1,lambda p,gg=gg: p.stamp(f'g{gg}'))
    gx=int(opt.get('gx',glast))
    for t in range(3): at(gx+2*t,lambda p,t=t: xstage(p,S,t))
    gy=int(opt.get('gy',max(glast+6,196)))
    def y0(p): S.tf=yfl(p)
    at(gy,y0)
    def y1(p):
        p.stamp('y0')
        p.poll(S.tf, lambda: yfl(p), lambda: check_all(p,T0,64), 4)
        p.stamp('y1')
        for t in range(3): S.tyl=p.vm(f'buffer_load_dwordx4 v[{88+4*t}:{91+4*t}], v{YV+t}, s[44:47], s62 offen sc1')
        p.wvm(S.txs)
        S.txr=[p.ds(f'ds_read_b128 v[{100+4*t}:{103+4*t}], v{XR} offset:{XST+64*t}') for t in range(3)]
    gy1=gy+int(opt.get('gyd',30))
    at(gy1,y1)
    for m in range(5):
        def xm(p,m=m):
            p.wds(S.txr[2])
            p.i(f'v_mfma_f32_16x16x32_bf16 v[{acc(3,m)}:{acc(3,m)+3}], v[{I1 if m&1 else I0}:{(I1 if m&1 else I0)+3}], v[{100+4*(m>>1)}:{103+4*(m>>1)}], v[{acc(3,m)}:{acc(3,m)+3}]')
        at(gy1+8+m,xm)
    for i in range(3):
        for m in range(5):
            at(G0+5*NT*(i+1)+4+(int(opt.get('pws',2))*m if i<2 else m), lambda p,i=i,m=m: p.ds(f'ds_write_b128 v{PW}, v[{acc(i,m)}:{acc(i,m)+3}] offset:{5120*i+1024*m}'))
    gb=G0+15*NT+4+4+1
    for g,grp in enumerate(groups):
        for o in grp: p.add(o)
        for fn in side.get(g,[]): fn(p)
        if g==gb:
            p.stamp('y2'); p.wvm(S.tyl); p.stamp('y3')
            p.ds(f'ds_write_b128 v{YW}, v[88:91]'); p.ds(f'ds_write_b128 v{YW}, v[92:95] offset:{8*160}')
            p.i('s_mov_b32 exec_lo, -1\ns_mov_b32 exec_hi, 0'); p.ds(f'ds_write_b128 v{YW}, v[96:99] offset:{16*160}'); p.i('s_mov_b64 exec, -1')
            p.wds0(); p.i('s_barrier')
            p.stamp('y4')
            ty=[]
            for t in range(3):
                a=YR+(t==2)
                p.ds(f'ds_read_b64_tr_b16 v[{88+4*t}:{89+4*t}], v{a} offset:{32*160*t}')
                ty.append(p.ds(f'ds_read_b64_tr_b16 v[{90+4*t}:{91+4*t}], v{a} offset:{32*160*t+4*160}'))
            tr=[]
            for i in range(3):
                for m in range(5): tr.append(p.ds(f'ds_read_b128 v[{acc(i,m)}:{acc(i,m)+3}], v{PR+i} offset:{1024*m}'))
    p.stamp('h')
    for m in range(5):
        p.wds(ty[m>>1])
        p.i(f'v_mfma_f32_16x16x32_bf16 v[{acc(3,m)}:{acc(3,m)+3}], v[{I1 if m&1 else I0}:{(I1 if m&1 else I0)+3}], v[{88+4*(m>>1)}:{91+4*(m>>1)}], v[{acc(3,m)}:{acc(3,m)+3}]')
    pk=lambda d,a,b: p.i(f'v_pk_add_f32 v[{d}:{d+1}], v[{a}:{a+1}], v[{b}:{b+1}]')
    p.wds(tr[9])
    for m in range(5):
        for d in (0,2): pk(acc(0,m)+d,acc(0,m)+d,acc(1,m)+d)
    p.wds(tr[14])
    for m in range(5):
        for d in (0,2): pk(acc(0,m)+d,acc(0,m)+d,acc(2,m)+d)
    for m in range(5):
        for d in (0,2): pk(acc(0,m)+d,acc(0,m)+d,acc(3,m)+d)
    for m in range(5):
        a=acc(0,m)
        p.i(f'v_cvt_pk_bf16_f32 v{88+2*m}, v{a}, v{a+1}\nv_cvt_pk_bf16_f32 v{89+2*m}, v{a+2}, v{a+3}')
        p.ds(f'ds_write_b64 v{OW}, v[{88+2*m}:{89+2*m}] offset:{OST+32*m}')
    to=[p.ds(f'ds_read_b128 v[{100+4*t}:{103+4*t}], v{PW} offset:{OST+1024*t}') for t in range(3)]
    for t in range(3):
        p.wds(to[t]); p.vm(f'buffer_store_dwordx4 v[{100+4*t}:{103+4*t}], v{XV+t}, s[48:51], s61 offen '+opt.get('osc','none').replace('none',''))
    l=p.lab('Lep'); p.i(f's_or_b32 s56, s2, s3\ns_cmp_lg_u32 s56, 0\ns_cbranch_scc1 {l}'); p.push()
    p.i(f'''
    v_lshrrev_b32 v8, 3, v0
    v_lshlrev_b32 v8, 12, v8
    v_bfe_u32 v9, v0, 1, 2
    v_lshl_add_u32 v8, v9, 7, v8
    v_and_b32 v9, 1, v0
    v_lshl_add_u32 v8, v9, 5, v8
    s_mov_b32 s79, {YF}''')
    def ld():
        for k in range(3): t=p.vm(f'buffer_load_dwordx4 v[{12+4*k}:{15+4*k}], v8, s[44:47], s79 offen offset:{16*k} sc1')
        return t
    def ck():
        p.i('s_mov_b64 s[56:57], -1')
        for k in range(12): p.i(f'v_cmp_eq_u32 vcc, s76, v{12+k}\ns_and_b64 s[56:57], s[56:57], vcc')
        p.i('s_cmp_eq_u64 s[56:57], -1')
    p.poll(ld(), ld, ck)
    set_flag(p,'0',8)
    p.pop(); p.label(l)
```

```python
from gen import *
C_G=2*math.sqrt(2/math.pi)*1.4426950408889634
STG=131072
class St: pass
def item(S,e):
    k=int(e[1:]); t=S.tok.setdefault(e,Tok(e))
    isx=e[0]=='x'
    unit=2*(k%5)+(0 if isx else 1)
    lo,hi,add,v,srd=(66,95,128*k,10,36) if isx else (67,69,k*64*3456,14,40)
    def f(p,q):
        if q==0:
            p.i(f's_add_u32 m0, s65, {unit*16384}')
            p.i(f's_cmp_ge_u32 s64, {10-k}\ns_cselect_b32 s83, s{hi}, s{lo}\ns_add_u32 s83, s83, {add}')
        p.vm(f'buffer_load_dwordx4 v{v+q}, s[{srd}:{srd+3}], s83 offen '+(f'offset:{1024*q} ' if q else '')+'lds', t if q==3 else None)
        if q==3: p.stamp('i'+e)
    return [lambda p,q=q: f(p,q) for q in range(4)]
def events(S, seq):
    return [f for e in seq.split() for f in item(S,e)]

def spread(p, main, evs, lo=0.0, hi=1.0):
    n=len(main); k=0
    posn=[int(n*(lo+(hi-lo)*(i+0.5)/len(evs))) for i in range(len(evs))] if evs else []
    masked=False
    for i,o in enumerate(main):
        while k<len(evs) and posn[k]<=i and not masked: evs[k](p); k+=1
        p.add(o)
        if 'exec' in o.text: masked = o.text!='s_mov_b64 exec, -1'
    while k<len(evs): evs[k](p); k+=1

def cmul(q, items):
    for n,(o,x,w) in enumerate(items):
        q.i(f'v_pk_mul_f32 v[{44+2*n}:{45+2*n}], v[{x}:{x+1}], v[{w}:{w+1}] op_sel_hi:[1,0]')
    for n,(o,x,w) in enumerate(items):
        q.i(f'v_pk_fma_f32 v[{o}:{o+1}], v[{x}:{x+1}], v[{w}:{w+1}], v[{44+2*n}:{45+2*n}] op_sel:[1,1,0] op_sel_hi:[0,1,1] neg_lo:[0,1,0]')

def kgen(S,p):
    q=Sub()
    B=[56,104]
    Z1,Z8,Z128,Z256,Z512,Z1024=0,2,4,6,8,10
    G=lambda k: 12+2*k
    p.stamp('f0',q)
    q.wvm(S.tpar)
    p.stamp('f1',q)
    q.i(f'v_lshlrev_b32 v38, 16, v38\nv_mul_f32 v38, {LOG2E:#x}, v38\nv_exp_f32 v38, v38\nv_lshlrev_b32 v39, 16, v39')
    bf16r(q,'v38','v38')
    for n,b in enumerate(B):
        un=(lambda d,s_: q.i(f'v_lshlrev_b32 v{d}, 16, v{s_}')) if n==0 else (lambda d,s_: q.i(f'v_and_b32 v{d}, 0xffff0000, v{s_}'))
        un(b+40,40); un(b+41,41); un(b+42,42); un(b+43,43)
    for b in B: q.i(f'v_mul_f32 v{b+40}, {LOG2E:#x}, v{b+40}\nv_mul_f32 v{b+41}, v{b+41}, v38')
    for b in B: q.i(f'v_exp_f32 v{b+40}, v{b+40}')
    for b in B: q.i(f'v_mul_f32 v{b+41}, {INV2PI:#x}, v{b+41}\nv_mul_f32 v{b+42}, v{b+42}, v38\nv_mul_f32 v{b+43}, v{b+43}, v38')
    for b in B: bf16r(q,f'v{b+40}',f'v{b+40}')
    for b in B: q.i(f'v_mul_f32 v{b+40}, v{b+40}, v38\nv_add_f32 v{b+G(0)}, v{b+42}, v{b+42}\nv_add_f32 v{b+G(0)+1}, v{b+43}, v{b+43}')
    for b in B: q.i(f'v_mul_f32 v{b+40}, {f2u(-1.4426950408889634):#x}, v{b+40}')
    for b in B: q.i(f'v_mul_f32 v{b+42}, 0x43000000, v{b+40}\nv_mul_f32 v{b+43}, 0x43000000, v{b+41}')
    for b in B: q.i(f'v_fract_f32 v{b+41}, v{b+41}\nv_fract_f32 v{b+43}, v{b+43}')
    for b in B: q.i(f'v_exp_f32 v{b+40}, v{b+40}\nv_exp_f32 v{b+42}, v{b+42}\nv_cos_f32 v{b+Z1}, v{b+41}\nv_sin_f32 v{b+Z1+1}, v{b+41}\nv_cos_f32 v{b+Z128}, v{b+43}\nv_sin_f32 v{b+Z128+1}, v{b+43}')
    for b in B:
        q.i(f'v_pk_mul_f32 v[{b+Z1}:{b+Z1+1}], v[{b+Z1}:{b+Z1+1}], v[{b+40}:{b+41}] op_sel_hi:[1,0]')
        q.i(f'v_pk_mul_f32 v[{b+Z128}:{b+Z128+1}], v[{b+Z128}:{b+Z128+1}], v[{b+42}:{b+43}] op_sel_hi:[1,0]')
    cmul(q,[(b+Z8,b+Z1,b+Z1) for b in B]+[(b+Z256,b+Z128,b+Z128) for b in B])
    cmul(q,[(b+Z8,b+Z8,b+Z8) for b in B]+[(b+Z512,b+Z256,b+Z256) for b in B])
    cmul(q,[(b+Z8,b+Z8,b+Z8) for b in B]+[(b+Z1024,b+Z512,b+Z512) for b in B])
    p.stamp('f2',q)
    wr=[0]
    def row(r, off, neg):
        o=152+2*(wr[0]%4); wr[0]+=1
        for n,b in enumerate(B): q.i(f'v_cvt_pk_bf16_f32 v{o+n}, v{b+off}, {"-" if neg else ""}v{b+off+1}')
        return q.ds(f'ds_write_b64 v{228+(r&7)}, v[{o}:{o+1}] offset:{r*512}')
    def frags(base):
        return [q.ds(f'ds_read_b128 v[{base+4*k}:{base+4*k+3}], v{236+(k&3)} offset:{256*(k>>2)}') for k in range(8)]
    E0,E1,Z16=36,38,40
    cmul(q,[(b+Z16,b+Z8,b+Z8) for b in B])
    q.i('v_mov_b32 v160, 0x3f80\nv_mov_b32 v161, 0x3f80'); q.ds('ds_write_b64 v228, v[160:161]')
    row(1,Z8,False); row(2,Z16,False)
    cmul(q,[(b+E1,b+Z8,b+Z16) for b in B]+[(b+E0,b+Z16,b+Z16) for b in B]); row(3,E1,False); row(4,E0,False)
    for j in range(5,15,2):
        cmul(q,[(b+E1,b+E1,b+Z16) for b in B]+[(b+E0,b+E0,b+Z16) for b in B]); row(j,E1,False); row(j+1,E0,False)
    cmul(q,[(b+E1,b+E1,b+Z16) for b in B]); row(15,E1,False)
    EF=164; GF=196
    p.stamp('k1',q)
    te=frags(EF)
    def tile(t):
        tg=frags(GF)
        l=[]
        for k in range(8):
            o=Sub()
            if t==0: o.wds(te[k])
            o.wds(tg[k])
            o.i(f'v_mfma_f32_16x16x32_bf16 v[{26+4*t}:{29+4*t}], v[{GF+4*k}:{GF+4*k+3}], v[{EF+4*k}:{EF+4*k+3}], '+('0' if k==0 else f'v[{26+4*t}:{29+4*t}]'))
            l.append(o.ops)
        return l
    T0,T1=E0,E1
    row(0,G(0),True)
    cmul(q,[(b+T0,b+G(0),b+Z1) for b in B]+[(b+G(4),b+G(0),b+Z128) for b in B]); row(1,T0,True); row(8,G(4),True)
    for k in range(1,4):
        cmul(q,[(b+G(k),b+T0,b+Z1) for b in B]+[(b+T1,b+T0,b+Z128) for b in B]); row(2*k,G(k),True); row(8+2*k-1,T1,True)
        cmul(q,[(b+T0,b+G(k),b+Z1) for b in B]+[(b+G(4+k),b+G(k),b+Z128) for b in B]); row(2*k+1,T0,True); row(8+2*k,G(4+k),True)
    cmul(q,[(b+T1,b+T0,b+Z128) for b in B]); row(15,T1,True)
    p.stamp('k2',q)
    m0=tile(0)
    def mf(l,k):
        for o in l[k]: q.add(o)
    keep={0:G(8),4:G(9),2:G(10),6:G(11)}
    for k in range(0,8,2):
        d0=keep.get(k,T0); d1=T1
        cmul(q,[(b+d0,b+G(k),b+Z256) for b in B]+[(b+d1,b+G(k+1),b+Z256) for b in B]); mf(m0,k); row(k,d0,True); mf(m0,k+1); row(k+1,d1,True)
    src=[(G(0),G(2)),(G(4),G(6)),(G(8),G(10)),(G(9),G(11))]; kp=[G(1),G(3),G(5),G(7)]
    for i in range(4):
        cmul(q,[(b+kp[i],b+src[i][0],b+Z512) for b in B]+[(b+T1,b+src[i][1],b+Z512) for b in B]); row(8+2*i,kp[i],True); row(9+2*i,T1,True)
    p.stamp('k3',q)
    m1=tile(1)
    s3=[G(0),G(4),G(8),G(9),G(1),G(3),G(5),G(7)]
    for i in range(0,8,2):
        d0=G(2) if i==0 else T0
        cmul(q,[(b+d0,b+s3[i],b+Z1024) for b in B]+[(b+T1,b+s3[i+1],b+Z1024) for b in B]); mf(m1,i); row(i,d0,True); mf(m1,i+1); row(i+1,T1,True)
    cmul(q,[(b+T0,b+G(2),b+Z1024) for b in B]); row(8,T0,True)
    m2=tile(2)
    for k in range(8): mf(m2,k)
    return q.ops

def pack(p,S):
    q=Sub()
    q.i(f'''
    v_bfe_u32 v40, v0, 2, 2
    v_bfe_u32 v41, v0, 4, 1
    v_lshl_add_u32 v40, v41, 2, v40
    v_lshlrev_b32 v41, 1, v40
    v_bfe_u32 v42, v0, 1, 1
    v_xor_b32 v41, v41, v42
    s_lshl_b32 s56, s3, 1
    v_xor_b32 v41, s56, v41
    v_lshrrev_b32 v42, 5, v0
    v_lshlrev_b32 v42, 12, v42
    v_lshl_add_u32 v42, v40, 8, v42
    v_and_b32 v43, 1, v0
    v_lshl_add_u32 v42, v43, 3, v42
    v_add_u32 v42, 114688, v42
    v_lshl_add_u32 v44, v41, 4, v42
    v_xor_b32 v41, 8, v41
    v_lshl_add_u32 v45, v41, 4, v42
    s_mul_i32 s58, s62, 5120
    s_add_u32 s58, s58, {W2P}
    s_or_b32 s58, s58, s63''')
    q.wvm(S.tw2); q.i('s_barrier')
    tp={}
    for t in range(10):
        b=64+4*t
        cb=t>>1; o=16384+8192*cb if cb<4 else 0
        q.ds(f'ds_read_b64_tr_b16 v[{b}:{b+1}], v{44+(t&1)} offset:{o}')
        tp[t]=q.ds(f'ds_read_b64_tr_b16 v[{b+2}:{b+3}], v{44+(t&1)} offset:{o+2048}')
        if t>=2:
            pst(q,t-2,tp)
    pst(q,8,tp); S.tpk=pst(q,9,tp)
    return q.ops
def pst(q,t,tp):
    q.i(f'''
    s_add_u32 s56, s3, {4*t}
    s_mul_i32 s61, s56, 52
    s_lshr_b32 s61, s61, 8
    s_mul_i32 s61, s61, {276480-5120}
    s_lshl_b32 s56, s56, 10
    s_add_u32 s56, s56, s61
    s_add_u32 s56, s56, s58''')
    q.wds(tp[t])
    return q.vm(f'buffer_store_dwordx4 v[{64+4*t}:{67+4*t}], v1, s[44:47], s56 offen sc1')

def gelu_ops(q, acc, out, tmp, k):
    for g in range(0,8,4):
        prs=[(acc+2*(g+u), tmp+2*u) for u in range(4)]
        for a,t in prs: q.i(f'v_pk_mul_f32 v[{t}:{t+1}], v[{a}:{a+1}], v[{a}:{a+1}]')
        for a,t in prs: q.i(f'v_pk_fma_f32 v[{t}:{t+1}], v[{t}:{t+1}], v[{k+2}:{k+3}], v[{k}:{k+1}] op_sel_hi:[1,0,0]')
        for a,t in prs: q.i(f'v_pk_mul_f32 v[{t}:{t+1}], v[{t}:{t+1}], v[{a}:{a+1}]')
        for a,t in prs: q.i(f'v_exp_f32 v{t}, v{t}\nv_exp_f32 v{t+1}, v{t+1}',cost=2)
        for a,t in prs: q.i(f'v_pk_fma_f32 v[{t}:{t+1}], v[{t}:{t+1}], v[{k+4}:{k+5}], v[{k+4}:{k+5}] op_sel_hi:[1,0,0]')
        for a,t in prs: q.i(f'v_rcp_f32 v{t}, v{t}\nv_rcp_f32 v{t+1}, v{t+1}',cost=2)
        for a,t in prs: q.i(f'v_pk_mul_f32 v[{t}:{t+1}], v[{t}:{t+1}], v[{a}:{a+1}]')
        for u,(a,t) in enumerate(prs): q.i(f'v_cvt_pk_bf16_f32 v{out+g+u}, v{t}, v{t+1}')
        S_=None
def hstore(q,mt,nt,out,pc):
    return q.vm(f'buffer_store_dwordx4 v[{out+4*pc}:{out+4*pc+3}], v3, s[44:47], s{84+nt} offen '+(f'offset:{1024*mt+512*pc} ' if mt or pc else '')+'sc1')

def ext_load(p):
    p.vm('buffer_load_dwordx4 v[184:187], v4, s[44:47], s82 offen sc1')
    p.vm('buffer_load_dwordx4 v[188:191], v4, s[44:47], s82 offen offset:512 sc1')
    p.vm('buffer_load_dwordx4 v[176:179], v5, s[44:47], s80 offen sc1')
    return p.vm('buffer_load_dwordx4 v[180:183], v5, s[44:47], s80 offen offset:512 sc1')
def ext_check(p):
    p.i('''
    v_cmp_eq_u32 vcc, s76, v179
    v_cmp_eq_u32 s[56:57], s76, v183
    s_and_b32 vcc_lo, vcc_lo, s56
    s_mov_b32 vcc_hi, -1
    v_cmp_eq_u32 s[56:57], s76, v185
    s_and_b64 vcc, vcc, s[56:57]
    v_cmp_eq_u32 s[56:57], s76, v189
    s_and_b64 vcc, vcc, s[56:57]
    s_cmp_eq_u64 vcc, -1''')

def gpath(p):
    S=St(); S.tok={}; S.dtok={}; S.pend=None
    opt=p.opt
    p.i(f'''
    s_sub_u32 s61, s35, 4
    s_cmp_lt_u32 s61, 20
    s_cselect_b32 s93, 0, 1
    s_cbranch_scc0 L_N0''')
    p.push('kc')
    p.i('''
    s_mul_i32 s86, s34, 20
    s_add_u32 s86, s86, s61
    s_lshl_b32 s56, s86, 2
    s_add_u32 s56, s56, s3
    s_lshl_b32 s57, s56, 8
    v_lshl_add_u32 v24, v0, 2, s57
    s_lshl_b32 s57, s56, 1
    v_mov_b32 v25, s57''')
    p.wds0(); p.stamp('s1')
    p.vm('global_load_dword v40, v24, s[6:7]'); p.vm('global_load_ushort v38, v25, s[14:15]'); p.vm('global_load_dword v41, v24, s[8:9]')
    p.vm('global_load_dword v42, v24, s[10:11]'); p.vm('global_load_dword v43, v24, s[12:13]')
    S.tpar=p.vm('global_load_ushort v39, v25, s[16:17]')
    p.vm('global_load_ushort v25, v25, s[26:27]')
    p.pop(); p.label('L_Gs')
    p.i(f'''
    s_and_b32 s56, s61, 3
    s_lshr_b32 s57, s34, 1
    s_lshl_b32 s57, s57, 2
    s_add_u32 s88, s56, s57
    s_lshr_b32 s56, s61, 2
    s_and_b32 s57, s34, 1
    s_mul_i32 s57, s57, 7
    s_add_u32 s89, s56, s57
    s_lshl_b32 s65, s3, 12
    s_lshl_b32 s56, s88, 2
    s_add_u32 s56, s56, s3
    s_mul_i32 s66, s56, {32*1280}
    s_mul_i32 s67, s3, {16*3456}
    s_lshl_b32 s57, s89, 8
    s_add_u32 s67, s67, s57
    s_lshr_b32 s56, s61, 2
    s_mul_i32 s56, s56, 47
    s_lshr_b32 s56, s56, 5
    s_and_b32 s57, s61, 3
    s_mul_i32 s57, s57, 5
    s_lshr_b32 s57, s57, 1
    s_add_u32 s64, s56, s57
    s_sub_u32 s56, s64, 10
    s_cmp_ge_u32 s64, 10
    s_cselect_b32 s64, s56, s64
    {'s_mov_b32 s64, 0' if opt.get('rot')=='0' else ''}
    s_lshl_b32 s56, s64, 7
    s_add_u32 s66, s66, s56
    s_sub_u32 s95, s66, 1280
    s_mul_i32 s56, s64, {64*3456}
    s_add_u32 s67, s67, s56
    s_sub_u32 s69, s67, {640*3456}
    v_lshrrev_b32 v6, 3, v0
    v_and_b32 v7, 7, v0
    v_lshrrev_b32 v8, 4, v0
    v_xor_b32 v8, v8, v7
    v_mul_u32_u24 v9, 1280, v6
    v_lshl_add_u32 v10, v8, 4, v9
    v_xor_b32 v8, 4, v8
    v_lshl_add_u32 v11, v8, 4, v9
    v_add_u32 v11, {10240-1024}, v11
    v_add_u32 v12, {2*(10240-1024)}, v10
    v_add_u32 v13, {2*(10240-1024)}, v11
    v_lshrrev_b32 v6, 4, v0
    v_and_b32 v7, 15, v0
    v_lshlrev_b32 v8, 2, v6
    v_xor_b32 v8, v8, v7
    v_mul_u32_u24 v9, 3456, v6
    v_lshl_add_u32 v14, v8, 4, v9
    v_add_u32 v15, {4*3456-1024}, v14
    v_add_u32 v16, {2*(4*3456-1024)}, v14
    v_add_u32 v17, {3*(4*3456-1024)}, v14''')
    srd_a(p)
    p.stamp('s2')
    ev=events(S,'x0 w0 x1 w1 x2 w2 x3 w3'); ni=int(opt.get('ninit',10))
    p.i('s_cmp_eq_u32 s93, 0\ns_cbranch_scc0 L_Gi'); p.push('kc')
    for f in ev[:ni]: f(p)
    p.pop()
    def n0blk():
        p.label('L_N0'); p.push()
        p.i(f'''
    s_lshl_b32 s62, s34, 3
    s_add_u32 s62, s62, s61
    s_sub_u32 s62, s62, 20
    s_lshl_b32 s86, s62, 2
    s_add_u32 s86, s86, {W2F}
    s_cmp_lt_u32 s62, 54
    s_cselect_b32 s63, 0, {OOB:#x}
    s_lshl_b32 s56, s62, 2
    s_add_u32 s56, s56, s3
    s_mul_i32 s56, s56, {8*1280}
    s_or_b32 s78, s56, s63
    v_lshrrev_b32 v6, 4, v0
    v_and_b32 v7, 15, v0
    v_lshlrev_b32 v8, 1, v6
    v_xor_b32 v7, v7, v8
    v_mul_u32_u24 v6, 1280, v6
    v_lshl_add_u32 v46, v7, 4, v6
    v_xor_b32 v7, 8, v7
    v_lshl_add_u32 v47, v7, 4, v6
    v_add_u32 v47, {4*1280-1024}, v47
    s_lshl_b32 s79, s3, 11''')
        p.wds0(); p.stamp('s1'); srd(p,52,24,1728*1280)
        for cb in range(5):
            p.i(f's_add_u32 m0, s79, {STG+8192*cb if cb<4 else 114688}\ns_add_u32 s57, s78, {cb*256}')
            p.vm('buffer_load_dwordx4 v46, s[52:55], s57 offen lds')
            S.tw2=p.vm('buffer_load_dwordx4 v47, s[52:55], s57 offen offset:1024 lds')
        p.i('s_branch L_Gs'); p.pop()
    if opt.get('lay','0')!='0':
        p.i('s_branch L_Gi'); n0blk(); fentry(p)
    p.label('L_Gi')
    srd_b(p)
    p.i(f'''
    s_and_b32 s56, s3, 1
    s_lshl_b32 s57, s88, 1
    s_add_u32 s56, s56, s57
    s_lshl_b32 s82, s56, 10
    s_add_u32 s82, s82, {STAT}
    s_mul_i32 s84, s56, {4*55296}
    s_lshl_b32 s97, s56, 7
    s_lshr_b32 s56, s3, 1
    s_lshl_b32 s57, s89, 1
    s_add_u32 s56, s56, s57
    s_lshl_b32 s57, s56, 2
    s_add_u32 s97, s97, s57
    s_add_u32 s97, s97, {HF}
    s_lshl_b32 s57, s56, 11
    s_add_u32 s84, s84, s57
    s_add_u32 s84, s84, {HP}
    s_add_u32 s85, s84, {2*55296}
    s_cmp_eq_u32 s56, 27
    s_cselect_b32 s84, {OOB:#x}, s84
    s_cselect_b32 s85, {OOB:#x}, s85
    s_cselect_b32 s56, 26, s56
    s_lshl_b32 s80, s56, 10
    s_add_u32 s80, s80, {AEXT}''')
    tile2(p,'G'); w2p_setup(p)
    p.i(f'''
    v_and_b32 v6, 31, v0
    v_lshrrev_b32 v7, 5, v0
    v_lshlrev_b32 v4, 4, v6
    v_lshl_add_u32 v5, v7, 31, v4
    v_bfe_u32 v8, v0, 1, 3
    v_xor_b32 v8, v8, v7
    s_and_b32 s56, s3, 1
    s_lshl_b32 s56, s56, 13
    v_lshl_add_u32 v9, v6, 7, s56''')
    for i in range(4):
        p.i(f'v_xor_b32 v6, {2*i}, v8\nv_lshl_add_u32 v{240+3*i}, v6, 4, v9\nv_add_u32 v{241+3*i}, 0x10000, v{240+3*i}\nv_add_u32 v{242+3*i}, 0x20000, v{240+3*i}')
    p.i(f'''
    v_bfe_u32 v6, v0, 2, 2
    v_lshl_add_u32 v8, v7, 3, v6
    v_lshlrev_b32 v8, 8, v8
    v_bfe_u32 v9, v0, 4, 1
    v_lshl_add_u32 v8, v9, 5, v8
    v_mul_u32_u24 v3, 55296, v9
    v_lshl_add_u32 v3, v7, 8, v3
    v_and_b32 v9, 3, v0
    v_lshl_add_u32 v8, v9, 3, v8
    s_and_b32 s56, s3, 2
    v_xor_b32 v6, s56, v6
    v_lshl_add_u32 v18, v6, 6, v8
    v_xor_b32 v21, 64, v18
    v_add_u32 v19, 0x10000, v18
    v_add_u32 v20, 0x20000, v18
    v_add_u32 v22, 0x10000, v21
    v_add_u32 v23, 0x20000, v21
    v_and_b32 v6, 15, v0
    v_lshl_add_u32 v3, v6, 4, v3''')
    if opt.get('arr'):
        p.wvm(S.tpar); p.stamp('ap'); p.wvm(S.tok['x0']); p.stamp('ax'); p.wvm(S.tok['w0']); p.stamp('aw')
    p.i(f'''
    s_cmp_eq_u32 s93, 0
    s_cbranch_scc0 L_Npack''')
    p.push('kc')
    p.i(f'''
    s_lshl_b32 s56, s3, 13
    s_add_u32 s56, s56, {STG}
    v_lshrrev_b32 v6, 1, v0
    v_and_b32 v7, 1, v0
    v_lshl_add_u32 v7, v7, 3, s56''')
    for f in range(8): p.i(f'v_xor_b32 v8, {2*f}, v6\nv_lshl_add_u32 v{228+f}, v8, 4, v7')
    p.i(f'''
    v_and_b32 v6, 7, v0
    v_lshlrev_b32 v6, 1, v6
    v_lshrrev_b32 v7, 4, v0
    v_xor_b32 v6, v6, v7
    v_and_b32 v7, 15, v0
    v_lshl_add_u32 v7, v7, 9, s56''')
    for k in range(4): p.i(f'v_xor_b32 v8, {4*k}, v6\nv_lshl_add_u32 v{236+k}, v8, 4, v7')
    kg=kgen(S,p)
    if opt.get('nokg'): kg=[o for o in kg if 'memtime' in o.text or o.kind=='wvm']
    nk=int(opt.get('nk',24)); S.nk=nk
    spread(p,kg,ev[ni:nk],float(opt.get('klo',0.5)),float(opt.get('khi',1.0)))
    p.stamp('k4')
    nonce(p)
    p.i('s_branch L_Gm'); p.pop()
    if opt.get('lay','0')=='0': n0blk()
    p.label('L_Npack'); p.push()
    ev=events(S,'x0 w0 x1 w1 x2 w2 x3 w3')
    npk=int(opt.get('npk',8))
    for e in ev[:npk]: e(p)
    for o in pack(p,S): p.add(o)
    for e in ev[npk:nk]: e(p)
    nonce(p)
    p.stamp('k4')
    p.pop(); p.label('L_Gm')
    p.stamp('a')
    if opt.get('stop')=='K':
        p.i(f's_lshl_b32 s56, s86, 2\ns_add_u32 s56, s56, s3\ns_lshl_b32 s56, s56, 12\ns_add_u32 s56, s56, {YB}\ns_cmp_eq_u32 s93, 0\ns_cselect_b32 s56, s56, {OOB:#x}')
        for t in range(3): p.vm(f'buffer_store_dwordx4 v[{26+4*t}:{29+4*t}], v1, s[44:47], s56 offen offset:{1024*t}')
        p.wvm0(); p.i('s_branch L_fin'); p.label('L_noconv'); return
    gemm1(p,S)
    if opt.get('stop')=='H':
        p.wvm0(); p.i('s_branch L_fin'); p.label('L_noconv'); return
    import gen_c
    gen_c.conv(p,S); gen_c.gemm2(p,S)

def gemm1(p,S):
    opt=p.opt
    ACC=lambda mt,nt: 64+32*mt+16*nt
    FA=lambda n,mt: 128+16*(n%3)+4*mt
    FB=lambda n,nt: 136+16*(n%3)+4*nt
    ft={}
    def rd(q,n,part):
        j,i=divmod(n,4)
        if part<2:
            mt=part; win,o=divmod((2*(j%5)+1)*16384,65536); b=FA(n,mt)
            q.ds(f'ds_read_b64_tr_b16 v[{b}:{b+1}], v{18+3*mt+win} offset:{o+4096*i}')
            q.ds(f'ds_read_b64_tr_b16 v[{b+2}:{b+3}], v{18+3*mt+win} offset:{o+4096*i+1024}')
        else:
            nt=part-2; win,o=divmod(2*(j%5)*16384,65536); b=FB(n,nt)
            ft[n]=q.ds(f'ds_read_b128 v[{b}:{b+3}], v{240+3*i+win} offset:{o+4096*nt}')
    pre={}
    def sync(q,j):
        q.wvm(S.tok.setdefault(f'w{j}',Tok(f'w{j}')))
        for fn in pre.get(j,[]): fn(q)
        q.i('s_barrier')
    side={}
    def at(g,fn): side.setdefault(g,[]).append(fn)
    step=float(opt.get('dstep',2.4)); g=0.0
    assert S.nk%4==0 and S.nk<=28
    for f in events(S,'x0 w0 x1 w1 x2 w2 x3 w3')[S.nk:]: at(int(g),f); g+=float(opt.get('dstep0',2.0))
    for j,b in ((4,0),(5,2),(6,3),(7,4),(8,5),(9,6)):
        g=max(g,16*b-8)
        for f in events(S,f'x{j} w{j}'): at(int(g),f); g+=step
        assert g-step<16*j-8, (j,g)
    gend=g
    def pk0(q):
        l=p.lab('Lpk'); q.i(f's_cmp_eq_u32 s93, 0\ns_cbranch_scc1 {l}'); q.push(); q.wvm(S.tpk); q.pop(); q.label(l)
    def pk1(q):
        l=p.lab('Lpk'); q.i(f's_lshl_b32 s56, s3, 1\ns_add_u32 s56, s56, s93\ns_cmp_eq_u32 s56, 1\ns_cbranch_scc0 {l}'); q.push(); set_flag(q,'s86',6,8,256); q.pop(); q.label(l)
    jb=int(opt.get('jpk',1))
    pre[jb]=[pk0]; at(max(0,16*jb-8),pk1)
    def f0(p): p.i(f's_lshl_b32 s79, s34, 8\ns_add_u32 s79, s79, {W2F}'); S.tf=w0_load(p,216,'s79')
    at(10+int(opt.get('gf0',78)),f0)
    gw=int(opt.get('gw',104))
    k=0; g=max(gw+2,gend); ws=float(opt.get('wstep',2.4))
    while g<158 and k<int(opt.get('nw1',24)):
        at(int(g),lambda p,k=k: w2p_load(p,k)); k+=1; g+=ws
    S.w2next=k
    def e0(p): S.te0=ext_load(p)
    ge=int(opt.get('gext',148))
    at(ge-int(opt.get('gel',20)),e0)
    def c0(p):
        p.stamp('x0')
        p.poll(S.te0, lambda: ext_load(p), lambda: ext_check(p))
        p.stamp('x1')
        p.i('v_mov_b32 v179, 0\nv_mov_b32 v183, 0')
        for nt in (0,1):
            b=184+4*nt; k=192+6*nt
            p.i(f'''
            v_mul_f32 v{k}, {f2u(-C_G):#x}, v{b+3}
            v_mul_f32 v{k+2}, v{b+3}, v{b+3}
            v_lshlrev_b32 v{k+4}, 16, v{b+2}
            v_and_b32 v{k+5}, 0xffff0000, v{b+2}
            v_mul_f32 v{k+2}, v{k+2}, v{k}
            v_add_f32 v{k+4}, v{k+4}, v{k+5}
            v_mul_f32 v{k+2}, {f2u(0.044715):#x}, v{k+2}
            v_mov_b32 v{b+3}, 0
            v_mov_b32 v{b+1}, v{b}''')
    at(ge,c0)
    for m in range(4):
        mt,nt=m>>1,m&1
        at(ge+3+m,lambda p,mt=mt,nt=nt: p.i(f'v_mfma_f32_32x32x16_bf16 v[{ACC(mt,nt)}:{ACC(mt,nt)+15}], v[{176+4*mt}:{179+4*mt}], v[{184+4*nt}:{187+4*nt}], v[{ACC(mt,nt)}:{ACC(mt,nt)+15}]'))
    sync(p,0)
    p.stamp('b0')
    for n in (0,1):
        for part in range(4): rd(p,n,part)
    for n in range(40):
        for m in range(4):
            g=4*n+m; mt,nt=m>>1,(m&1)^(m>>1)
            if m==0: p.wds(ft[n])
            a=ACC(mt,nt)
            p.i(f'v_mfma_f32_32x32x16_bf16 v[{a}:{a+15}], v[{FA(n,mt)}:{FA(n,mt)+3}], v[{FB(n,nt)}:{FB(n,nt)+3}], '+('0' if n==0 else f'v[{a}:{a+15}]'))
            if n+2<40:
                if m==0 and (n+2)%4==0:
                    j=(n+2)//4
                    if g==gw:
                        p.wvm(S.tok[f'w{j}']); w0_poll(p,216,'s79',64,S.tf)
                    else: sync(p,j)
                rd(p,n+2,m)
            for fn in side.get(g,[]): fn(p)
            if g==79: p.stamp('b')
            if g%16==15: p.stamp(f'j{g//16}')
    p.stamp('c')
    p.i(f's_barrier\ns_lshl_b32 s79, s34, 7\ns_add_u32 s79, s79, {XNF}\ns_lshl_b32 s81, s86, 14\ns_add_u32 s81, s81, s65\ns_add_u32 s81, s81, {XNT}\ns_cmp_eq_u32 s93, 0\ns_cselect_b32 s81, s81, {OOB:#x}')
    S.tu=Tok('u')
    def xl(p): S.tx=w0_load(p,216,'s79')
    def xp(p):
        p.stamp('c0'); w0_poll(p,216,'s79',32,S.tx); p.stamp('c1')
    def ul(p,m): p.vm(f'buffer_load_dwordx4 v[{216+4*m}:{219+4*m}], v1, s[44:47], s81 offen '+(f'offset:{1024*m} ' if m else '')+'sc1', S.tu if m==3 else None)
    q=Sub()
    for m in range(4):
        mt,nt=m>>1,m&1; o=128+8*m
        gelu_ops(q,ACC(mt,nt),o,160,192+6*nt)
        hstore(q,mt,nt,o,0); th=hstore(q,mt,nt,o,1)
    import gen_c
    p.i('s_mul_i32 s65, s3, 40960')
    x=Sub(); gen_c.expand(x); gen_c.ustage(p,x,S)
    chunks=[]; masked=False
    for o in x.ops:
        if masked: chunks[-1].append(o)
        else: chunks.append([o])
        if 'exec' in o.text: masked = o.text!='s_mov_b64 exec, -1'
    ev=[lambda p,c=c: p.extend(c) for c in chunks]
    iu=[i for i,c in enumerate(chunks) if c[0].kind=='wvm'][0]
    f0,f1=float(opt.get('xf0',0.0)),float(opt.get('xf1',0.3))
    n=len(ev); i0=int(f0*iu); i1=int(f1*iu)
    ev=ev[:i0]+[xl]+ev[i0:i1]+[xp]+[lambda p,m=m: ul(p,m) for m in range(4)]+ev[i1:]
    n=int(opt.get('ngt',0))
    if n:
        st0=(S.w2next//5)*4*5120; lanes=-(-((54*5120-st0)//128)//(16*n)); assert lanes<=64
        p.i(f'''
        s_lshl_b32 s56, s87, 2
        s_add_u32 s56, s56, s3
        s_mul_i32 s78, s56, {lanes*128}
        s_mul_i32 s56, s60, 276480
        s_add_u32 s78, s78, s56
        s_add_u32 s78, s78, {W2P+st0}
        v_min_u32 v25, {lanes-1}, v0
        v_lshlrev_b32 v25, 7, v25''')
        def tch(p,k): p.i(f's_add_u32 s83, s78, {k*16*lanes*128}'); touch(p,25,'s83',255)
        t0,t1=float(opt.get('gt0',0.0)),float(opt.get('gt1',0.8))
        for k in range(n-1,-1,-1):
            ev.insert(int(len(chunks)*(t0+(t1-t0)*k/max(1,n-1))),lambda p,k=k: tch(p,k))
    lo=float(opt.get('xlo',0.0)); hi=float(opt.get('xhi',1.0))
    spread(p,q.ops,ev,lo,hi)
    S.th=th
    p.stamp('d')
    if opt.get('stop')=='H':
        p.wvm(th); set_flag(p,'s97',6)
```

```python
import sys, struct, math
from asmgen import *

NAME='parallel_sum__ssm_conv_s4d__mixer_channel_mlp__prompt_kernel'
EPO=0; W2F=8192; XNF=1024; HF=2048; YF=0x18000; STAT=32768; AEXT=65536; XNT=0x20000; YB=0x2A0000; W2P=0x520000; HP=0x740000; WSZ=0xE00000
STAMP=0xE00000
OOB=0x80000000
TAG=0x3F803F80
def f2u(x): return struct.unpack('<I',struct.pack('<f',x))[0]
LOG2E=f2u(1.4426950408889634); INV2PI=f2u(1/(2*math.pi)); EPS=f2u(1e-5)
SPIN=20000
SP=[70,72,74,18,4,6,8,10,12,14,16,20,24,28,32,22,26]

class G(Prog):
    def __init__(s, opt):
        super().__init__(); s.opt=opt; s.nl=0; s.w2t={}; s.K1=int(opt.get('K1',64))
    def lab(s,p='L'):
        s.nl+=1; return f'{p}_{s.nl}'
    def stamp(s, name, q=None):
        st=s.opt.get('stamps')
        if not st: return
        l=str(st).split(',')
        if name not in l: return
        r=SP[l.index(name)]
        (q or s).i(f's_memtime s[{r}:{r+1}]')
    def poll(s, tok, reload_fn, check_fn, sleep=2):
        ok=s.lab('Lok'); lp=s.lab('Lsp')
        s.wvm(tok); check_fn(); s.i(f's_cbranch_scc1 {ok}')
        s.push()
        s.i(f's_mov_b32 s96, 0'); s.label(lp)
        s.i(f's_sleep {sleep}'); reload_fn(); s.wvm0(); check_fn()
        s.i(f's_cbranch_scc1 {ok}')
        s.i(f's_add_u32 s96, s96, 1\ns_cmp_lt_u32 s96, {SPIN}\ns_cbranch_scc1 {lp}')
        s.pop(); s.label(ok)

def bf16r(p, dst, src):
    p.i(f'v_cvt_pk_bf16_f32 {dst}, {src}, {src}\nv_and_b32 {dst}, 0xffff0000, {dst}')

def xreduce(p, regs_, tmp, steps):
    for st in steps:
        for k,r in enumerate(regs_):
            t=tmp[k%len(tmp)]
            if st==8: p.i(f'v_add_f32_dpp v{r}, v{r}, v{r} row_ror:8 row_mask:0xf bank_mask:0xf')
            else:
                p.i(f'v_mov_b32 v{t}, v{r}'); p.i(f'v_permlane{st}_swap_b32 v{r}, v{t}'); p.i(f'v_add_f32 v{r}, v{r}, v{t}')

def prologue(p):
    p.i(f'''
    s_load_dwordx16 s[4:19], s[0:1], 0
    s_load_dwordx8 s[20:27], s[0:1], 64
    s_load_dwordx4 s[28:31], s[0:1], 96
    s_load_dwordx2 s[32:33], s[0:1], 112
    s_cmp_lt_u32 s2, 256
    s_cbranch_scc1 L_go
    s_endpgm''')
    p.label('L_go')
    if p.opt.get('stamps'): p.i('s_memrealtime s[94:95]\ns_memtime s[68:69]')
    p.i(f'''
    v_lshrrev_b32 v1, 6, v0
    v_and_b32 v0, 63, v0
    s_lshr_b32 s35, s2, 3
    v_readfirstlane_b32 s3, v1
    s_and_b32 s34, s2, 7
    v_lshlrev_b32 v1, 4, v0
    ''')
    codepf(p)
    p.i('s_cmp_lt_u32 s35, 4\ns_cbranch_scc1 L_F')

def codepf(p):
    l=p.lab('Lpf'); h=p.lab('Lpc')
    p.i(f's_cmp_lg_u32 s3, {9 if p.opt.get("nopf") else 3}\ns_cbranch_scc1 {l}'); p.push()
    p.i('s_getpc_b64 s[56:57]'); p.label(h)
    p.i(f'''
    s_sub_u32 s56, s56, {h}-L_go
    s_subb_u32 s57, s57, 0
    s_and_b32 s58, s35, 7
    s_mul_i32 s58, s58, 40
    v_min_u32 v2, 39, v0
    v_add_u32 v2, s58, v2
    v_lshlrev_b32 v2, 7, v2
    v_min_u32 v2, L_codeend-L_go-128, v2
    v_mov_b32 v3, s57
    v_add_co_u32 v2, vcc, s56, v2
    v_addc_co_u32 v3, vcc, 0, v3, vcc''')
    p.vm('global_load_dword v255, v[2:3], off')
    p.pop(); p.label(l)

def srd(p, n, lo, size):
    p.i(f's_mov_b32 s{n}, s{lo}\ns_mov_b32 s{n+1}, s{lo+1}\ns_mov_b32 s{n+2}, {size}\ns_mov_b32 s{n+3}, 0x20000')
def srd_a(p):
    srd(p,36,4,2048*1280); srd(p,40,20,640*3456)
def srd_b(p):
    srd(p,44,32,WSZ+(0x100000 if p.opt.get('stamps') else 0)); srd(p,48,28,2048*1280)
    p.i('v_mov_b32 v254, 0'); p.tepo=p.vm('buffer_load_dword v254, v254, s[44:47], 0 offen sc1')

def tile2(p, role):
    if p.opt.get('part','2d')=='tok':
        p.i('''
        s_and_b32 s87, s35, 3
        s_lshl_b32 s58, s34, 2
        s_add_u32 s59, s87, s58
        s_lshr_b32 s58, s35, 2
        s_add_u32 s56, s87, s58
        s_add_u32 s60, s56, 1
        s_and_b32 s60, s60, 3''')
        if role!='F':
            p.i('''
            s_add_u32 s56, s56, 2
            s_and_b32 s56, s56, 3
            s_add_u32 s56, s56, 4
            s_cmp_lt_u32 s58, 3
            s_cselect_b32 s60, s60, s56
            s_sub_u32 s57, s35, 24
            s_cmp_ge_u32 s35, 24
            s_cselect_b32 s60, s57, s60''')
        return
    if role=='F': p.i('s_lshl_b32 s59, s35, 1\ns_mov_b32 s60, s35')
    else:
        p.i('''
        s_sub_u32 s56, s35, 4
        s_mul_i32 s57, s56, 52
        s_lshr_b32 s57, s57, 8
        s_mul_i32 s58, s57, 5
        s_sub_u32 s56, s56, s58
        s_lshl_b32 s59, s57, 1
        s_add_u32 s60, s57, s56
        s_cmp_lt_u32 s56, 2
        s_cselect_b32 s58, 2, 0
        s_cselect_b32 s56, 0, 1
        s_add_u32 s60, s60, s58
        s_add_u32 s59, s59, s56
        s_sub_u32 s56, s35, 24
        s_lshr_b32 s57, s56, 1
        s_add_u32 s57, s57, 1
        s_cmp_ge_u32 s35, 24
        s_cselect_b32 s59, s56, s59
        s_cselect_b32 s60, s57, s60
        s_and_b32 s60, s60, 3''')
    p.i('''
    s_lshr_b32 s56, s34, 1
    s_lshl_b32 s56, s56, 3
    s_add_u32 s59, s59, s56
    s_and_b32 s56, s34, 1
    s_lshl_b32 s56, s56, 2
    s_add_u32 s60, s60, s56''')

def touch(p, v, soff, dst):
    return p.vm(f'buffer_load_dword v{dst}, v{v}, s[44:47], {soff} offen sc1')

def nonce(p):
    p.wvm(p.tepo)
    p.i('v_readfirstlane_b32 s76, v254\ns_mul_i32 s76, s76, 0x19660d\ns_add_u32 s76, s76, 0x3c6ef35f')
def check_all(p, v, n):
    p.i(f'v_cmp_eq_u32 vcc, s76, v{v}')
    if n<64:
        m=((1<<64)-1)^((1<<n)-1)
        if m&0xffffffff: p.i(f's_or_b32 vcc_lo, vcc_lo, {m&0xffffffff:#x}')
        p.i(f's_or_b32 vcc_hi, vcc_hi, {m>>32:#x}')
    p.i('s_cmp_eq_u64 vcc, -1')
def flags1_load(p, v, soff):
    p.i(f'v_lshlrev_b32 v{v}, 2, v0'); return p.vm(f'buffer_load_dword v{v}, v{v}, s[44:47], {soff} offen sc1')
def set_flag(p, soff, v, reps=1, stride=0):
    p.i(f'v_mov_b32 v{v}, s76\nv_mul_u32_u24 v{v+1}, {stride}, v0\ns_mov_b64 exec, {(1<<reps)-1}')
    p.vm(f'buffer_store_dword v{v}, v{v+1}, s[44:47], {soff} offen sc1')
    p.i('s_mov_b64 exec, -1')
class W0:
    def __init__(s,p): s.p=p
    def __enter__(s):
        s.l=s.p.lab('Lw0'); s.p.i(f's_cmp_lg_u32 s3, 0\ns_cbranch_scc1 {s.l}'); s.p.push()
    def __exit__(s,*a): s.p.pop(); s.p.label(s.l)
def w0_load(p, v, soff):
    with W0(p): t=flags1_load(p,v,soff)
    return t
def w0_poll(p, v, soff, n, tok=None, sleep=2):
    with W0(p):
        if tok is None: tok=flags1_load(p,v,soff)
        p.poll(tok, lambda: flags1_load(p,v,soff), lambda: check_all(p,v,n), sleep)
    p.i('s_barrier')

def fentry(p):
    p.label('L_F')
    save=p.reg; p.reg=('F',)
    if p.opt.get('noF'): p.i('s_endpgm')
    p.i(f'''
    s_lshl_b32 s61, s34, 2
    s_add_u32 s61, s61, s35
    s_and_b32 s56, s34, 1
    s_lshr_b32 s57, s34, 1
    s_lshl_b32 s57, s57, 2
    s_add_u32 s57, s57, s35
    s_mul_i32 s62, s56, 14
    s_add_u32 s62, s62, s57
    s_sub_u32 s56, 14, s56
    s_cmp_lt_u32 s57, s56
    s_cselect_b32 s62, s62, 0
    s_cselect_b32 s63, 0, {OOB:#x}''')
    p.i(f'''
    s_and_b32 s64, s3, 1
    s_lshl_b32 s64, s64, 2
    v_lshrrev_b32 v2, 4, v0
    v_and_b32 v3, 15, v0
    v_xor_b32 v8, v3, v2
    v_xor_b32 v8, s64, v8
    v_mul_u32_u24 v9, 1280, v2''')
    for rg in range(4):
        p.i(f'v_xor_b32 v14, {4*rg}, v8\nv_lshl_add_u32 v14, v14, 4, v9\nv_add_u32 v{10+rg}, {4*rg*1280}, v14')
    p.i(f'''
    s_lshl_b32 s56, s61, 2
    s_add_u32 s56, s56, s3
    s_mul_i32 s56, s56, {16*1280}
    s_mul_i32 s65, s3, 20480''')
    tx={}
    p.wds0(); p.stamp('s1'); srd_a(p)
    for cb in range(5):
        for rg in range(4):
            p.i(f's_add_u32 m0, s65, {cb*4096+rg*1024}')
            if rg==0: p.i(f's_add_u32 s57, s56, {cb*256}')
            tx[cb,rg]=p.vm(f'buffer_load_dwordx4 v{10+rg}, s[36:39], s57 offen lds')
    p.i('s_branch L_F2'); p.reg=save
    p.ftx=tx

def fpath(p):
    if not hasattr(p,'ftx'): fentry(p)
    tx=p.ftx
    p.label('L_F2'); p.push('F')
    srd_b(p)
    p.i(f'''
    v_lshrrev_b32 v14, 3, v0
    v_and_b32 v15, 7, v0
    v_mul_u32_u24 v14, 3456, v14
    v_lshl_add_u32 v61, v15, 4, v14
    s_mul_i32 s56, s3, {160*3456}
    s_lshl_b32 s57, s62, 7
    s_add_u32 s56, s56, s57
    s_or_b32 s80, s56, s63''')
    tw=[]
    def w1ld():
        m=len(tw)
        if m<20:
            p.i(f's_add_u32 s57, s80, {m*8*3456}')
            tw.append(p.vm(f'buffer_load_dwordx4 v[{64+4*m}:{67+4*m}], v61, s[40:43], s57 offen'))
    p.i(f's_lshl_b32 s56, s62, 7\nv_lshl_add_u32 v15, v0, 1, s56')
    tb1=p.vm('global_load_ushort v15, v15, s[22:23]')
    p.stamp('f0')
    p.i(f'''
    v_xor_b32 v8, s64, v3
    v_xor_b32 v8, v8, v2
    v_lshlrev_b32 v9, 8, v3
    v_add_u32 v9, s65, v9''')
    for k in range(4):
        p.i(f'v_xor_b32 v14, {4*k}, v8\nv_lshl_add_u32 v{16+k}, v14, 4, v9')
    p.i(f's_mov_b32 s66, {TAG:#x}')
    for k in range(8): p.i(f'v_mov_b32 v{20+k}, 0')
    rd={}
    def rdx(cb):
        p.wvm(tx[cb,3])
        for k in range(4): rd[cb,k]=p.ds(f'ds_read_b128 v[{160+16*(cb%2)+4*k}:{163+16*(cb%2)+4*k}], v{16+k} offset:{cb*4096}')
    rdx(0)
    p.stamp('f1')
    for cb in range(5):
        if cb<4: rdx(cb+1)
        for k in range(4):
            p.wds(rd[cb,k])
            for e in range(4):
                r=160+16*(cb%2)+4*k+e
                p.i(f'v_dot2_f32_bf16 v{20+e}, v{r}, s66, v{20+e}\nv_dot2_f32_bf16 v{24+e}, v{r}, v{r}, v{24+e}')
            if cb>=int(p.opt.get('fw',1)) and (k%2==1 or cb>=2): w1ld()
    p.i('''
    v_add_f32 v20, v20, v21
    v_add_f32 v22, v22, v23
    v_add_f32 v24, v24, v25
    v_add_f32 v26, v26, v27
    v_add_f32 v20, v20, v22
    v_add_f32 v21, v24, v26''')
    p.stamp('f2')
    xreduce(p,[20,21],[22,23],[16,32])
    p.i(f'''
    v_mul_f32 v20, {f2u(1/640):#x}, v20
    v_mul_f32 v21, {f2u(1/640):#x}, v21
    v_fma_f32 v21, -v20, v20, v21
    v_max_f32 v21, 0, v21''')
    w1ld()
    bf16r(p,'v22','v20')
    bf16r(p,'v23','v21')
    p.i(f'v_add_f32 v23, {EPS:#x}, v23'); bf16r(p,'v23','v23')
    w1ld()
    p.i('v_sqrt_f32 v23, v23'); bf16r(p,'v23','v23')
    p.i('''
    v_rcp_f32 v24, v23
    v_sub_f32 v25, v20, v22
    v_mul_f32 v25, v25, v24
    v_mul_f32 v26, v21, v24
    v_mul_f32 v26, v26, v24
    v_mul_f32 v27, v22, v24
    v_sub_f32 v27, 0, v27''')
    w1ld()
    bf16r(p,'v25','v25'); bf16r(p,'v26','v26')
    p.i(f'v_add_f32 v26, {EPS:#x}, v26'); bf16r(p,'v26','v26')
    p.i('v_sqrt_f32 v26, v26'); bf16r(p,'v26','v26')
    p.i('''
    v_mul_f32 v26, v26, v23
    v_fma_f32 v25, v25, v23, v22
    v_rcp_f32 v31, v26''')
    bf16r(p,'v22','v25'); nonce(p); p.i('v_sub_f32 v25, v25, v22\nv_cvt_pk_bf16_f32 v28, -v22, -v25\nv_mov_b32 v29, s76')
    bf16r(p,'v22','v26'); p.i('v_sub_f32 v26, v26, v22\nv_cvt_pk_bf16_f32 v30, v22, v26')
    while len(tw)<int(p.opt.get('fw2',0)): w1ld()
    T1=81920; T2=81920+1024
    p.i(f'''
    s_lshl_b32 s56, s61, 2
    s_add_u32 s56, s56, s3
    s_lshl_b32 s56, s56, 8
    s_add_u32 s56, s56, {STAT}
    s_lshl_b32 s57, s3, 6
    v_lshl_add_u32 v22, v0, 2, s57
    s_mov_b64 exec, 0xffff''')
    p.vm('buffer_store_dwordx4 v[28:31], v1, s[44:47], s56 offen sc1')
    p.i(f'v_add_u32 v22, {T1}, v22')
    p.ds('ds_write_b32 v22, v24'); p.ds('ds_write_b32 v22, v27 offset:256')
    p.i('s_mov_b64 exec, -1')
    p.stamp('a')
    p.wds0(); p.i('s_barrier')
    p.i(f'''
    v_bfe_u32 v23, v0, 2, 3
    v_lshlrev_b32 v23, 5, v23
    v_add_u32 v23, {T1}, v23''')
    for k in range(2): p.ds(f'ds_read_b128 v[{44+4*k}:{47+4*k}], v23 offset:{16*k}')
    for k in range(2): tl=p.ds(f'ds_read_b128 v[{52+4*k}:{55+4*k}], v23 offset:{256+16*k}')
    def colsum():
        p.stamp('c')
        p.i('s_mov_b32 s66, 0x3f80\ns_mov_b32 s67, 0x3f800000')
        for m in range(20):
            if m%4==0: p.wvm(tw[m+3])
            for e in range(4):
                r=64+4*m+e
                c0='0' if m==0 else f'v{32+2*e}'; c1='0' if m==0 else f'v{33+2*e}'
                p.i(f'v_dot2_f32_bf16 v{32+2*e}, v{r}, s66, {c0}\nv_dot2_f32_bf16 v{33+2*e}, v{r}, s67, {c1}')
        for st in (8,16,32):
            if st==8:
                for r in range(32,40): p.i(f'v_add_f32_dpp v{r}, v{r}, v{r} row_ror:8 row_mask:0xf bank_mask:0xf')
            else:
                for r in range(32,40): p.i(f'v_mov_b32 v{r+32}, v{r}')
                for r in range(32,40): p.i(f'v_permlane{st}_swap_b32 v{r}, v{r+32}')
                for r in range(32,40,2): p.i(f'v_pk_add_f32 v[{r}:{r+1}], v[{r}:{r+1}], v[{r+32}:{r+33}]')
        p.i(f'''
        s_lshl_b32 s57, s3, 8
        s_add_u32 s57, s57, {T2}
        v_lshl_add_u32 v22, v0, 5, s57
        s_mov_b64 exec, 0xff''')
        p.ds('ds_write_b128 v22, v[32:35]'); p.ds('ds_write_b128 v22, v[36:39] offset:16')
        p.i('s_mov_b64 exec, -1'); p.wds0(); p.i('s_barrier')
        with W0(p):
            p.i(f'v_lshlrev_b32 v22, 2, v0\nv_add_u32 v22, {T2}, v22')
            tt=[p.ds(f'ds_read_b32 v{32+k}, v22 offset:{256*k}') for k in range(4)]
            p.wds(tt[3])
            p.i('v_add_f32 v32, v32, v33\nv_add_f32 v34, v34, v35\nv_add_f32 v32, v32, v34')
            p.i('v_cvt_pk_bf16_f32 v36, v32, v32\nv_and_b32 v33, 0xffff0000, v36\nv_sub_f32 v33, v32, v33\nv_cvt_pk_bf16_f32 v37, v33, v33')
            p.wvm(tb1)
            p.i(f'''
            v_lshl_add_u32 v38, v15, 16, v15
            v_mov_b32 v39, s76
            s_lshl_b32 s56, s62, 10
            s_add_u32 s56, s56, {AEXT}
            s_or_b32 s56, s56, s63''')
            p.vm('buffer_store_dwordx4 v[36:39], v1, s[44:47], s56 offen sc1')
        p.stamp('b')
    tile2(p,'F'); p.i(f's_lshl_b32 s79, s34, 8\ns_add_u32 s79, s79, {W2F}')
    p.i(f'''
    v_bfe_u32 v8, v0, 2, 2
    v_and_b32 v9, 1, v0
    v_lshl_add_u32 v8, v9, 3, v8
    v_bfe_u32 v9, v0, 4, 1
    v_bfe_u32 v22, v0, 1, 1
    v_lshl_add_u32 v9, v9, 1, v22
    v_lshlrev_b32 v14, 2, v22
    v_xor_b32 v14, v14, v8
    v_xor_b32 v14, s3, v14
    v_mul_u32_u24 v9, 20480, v9
    v_lshl_add_u32 v9, v8, 8, v9
    v_lshrrev_b32 v22, 5, v0
    v_lshl_add_u32 v9, v22, 3, v9
    v_and_b32 v24, 31, v0
    v_lshlrev_b32 v24, 4, v24
    v_lshl_add_u32 v24, v22, 14, v24
    s_lshl_b32 s81, s3, 15
    s_lshl_b32 s57, s61, 9
    s_add_u32 s81, s81, s57
    s_add_u32 s81, s81, {XNT}''')
    for k in range(4): p.i(f'v_xor_b32 v22, {4*k}, v14\nv_lshl_add_u32 v{16+k}, v22, 4, v9')
    tn={}
    def nrd(t):
        b=160+4*(t%4)
        p.ds(f'ds_read_b64_tr_b16 v[{b}:{b+1}], v{16+(t&3)} offset:{(t>>2)*4096}')
        tn[t]=p.ds(f'ds_read_b64_tr_b16 v[{b+2}:{b+3}], v{16+((t&3)^1)} offset:{(t>>2)*4096+1024}')
    TC=int(p.opt.get('ftc',10))
    for t in range(3): nrd(t)
    p.wds(tl)
    for t in range(20):
        if t==TC:
            while len(tw)<20: w1ld()
            colsum()
        if t+3<20: nrd(t+3)
        b=160+4*(t%4); o=184+4*(t%2)
        p.wds(tn[t])
        for k in range(4):
            p.i(f'v_lshlrev_b32 v{176+2*k}, 16, v{b+k}\nv_and_b32 v{177+2*k}, 0xffff0000, v{b+k}')
        w1ld()
        for k in range(4):
            p.i(f'v_pk_fma_f32 v[{176+2*k}:{177+2*k}], v[{176+2*k}:{177+2*k}], v[{44+2*k}:{45+2*k}], v[{52+2*k}:{53+2*k}]')
        for k in range(4): p.i(f'v_cvt_pk_bf16_f32 v{o+k}, v{176+2*k}, v{177+2*k}')
        p.i(f's_add_u32 s57, s81, {t*8*16384}')
        txn=p.vm(f'buffer_store_dwordx4 v[{o}:{o+3}], v24, s[44:47], s57 offen sc1')
    p.i(f's_lshl_b32 s58, s61, 2\ns_add_u32 s58, s58, {XNF}')
    p.wvm(txn); p.i('s_barrier')
    with W0(p): set_flag(p,'s58',60,8,128)
    p.stamp('d')
    if p.opt.get('stop')=='F':
        p.i('s_branch L_fin')
    else:
        if p.opt.get('stop')=='K': p.i('s_branch L_fin')
        w0_poll(p,60,'s79',64,None,4)
        w2p_setup(p)
        for k in range(p.K1): w2p_load(p,k)
        p.i('s_branch L_noconv')
    p.pop()

def w2reg(it,m):
    k=W2ORD.index(it)*5+m
    if k<64: return f'a[{4*k}:{4*k+3}]'
    return f'v[{232+4*(k-64)}:{235+4*(k-64)}]'
W2ORD=list(range(14))
def step_bases(p, base, last, stride):
    p.i(f'''
    s_add_u32 s{last}, s{base}, {13*stride}
    s_cmp_lt_u32 s3, 2
    s_cselect_b32 s{last}, s{last}, {OOB:#x}''')
def step_soff(p, it, stride, first, base, last, tmp):
    if it==13: return f's{last}'
    if it==0: return f's{base}'
    if first: p.i(f's_add_u32 s{tmp}, s{base}, {it*stride}')
    return f's{tmp}'
def w2p_setup(p):
    p.i(f'''
    s_mul_i32 s90, s60, 276480
    s_mul_i32 s91, s3, 5120
    s_add_u32 s90, s90, s91
    s_add_u32 s90, s90, {W2P}
    v_add_u32 v2, 0x1000, v1''')
    step_bases(p,90,77,20480)
W2T={}
def w2p_load(p,k,first=False):
    it=W2ORD[k//5]; m=k%5
    so=step_soff(p,it,20480,m==0 or first,90,77,92)
    return p.vm(f'buffer_load_dwordx4 {w2reg(it,m)}, v{2 if m==4 else 1}, s[44:47], {so} offen '+(f'offset:{m*1024} ' if 0<m<4 else '')+'sc1', p.w2t.setdefault(k,Tok(f'w2_{k}')))

def finish(p):
    p.label('L_fin')
    if p.opt.get('stamps'):
        p.wvm0()
        p.i('s_memtime s[62:63]\ns_memrealtime s[96:97]'); p.wds0()
        src=[f's{r}' for r in SP]+['s62']
        p.i(f's_lshl_b32 s56, s2, 2\ns_add_u32 s56, s56, s3\ns_lshl_b32 s56, s56, 7\ns_add_u32 s56, s56, {STAMP}\nv_mov_b32 v9, 0\ns_mov_b64 exec, 1')
        for q in range(5):
            for e in range(4):
                k=4*q+e
                if k<18: p.i(f's_sub_u32 s57, {src[k]}, s68\nv_mov_b32 v{4+e}, s57')
                else: p.i(f'v_mov_b32 v{4+e}, s{94 if k==18 else 96}')
            p.vm(f'buffer_store_dwordx4 v[4:7], v9, s[44:47], s56 offen offset:{16*q}')
            p.i('s_nop 1')
    p.i('s_endpgm')

def build(opt):
    import gen_g
    p=G(opt)
    prologue(p)
    if opt.get('ffirst'):
        p.i('s_branch L_G'); fpath(p); p.label('L_G'); p.push('G'); gen_g.gpath(p); p.pop(); finish(p)
    else:
        p.push('G'); gen_g.gpath(p); p.pop(); finish(p); fpath(p)
    p.label('L_codeend')
    ops=resolve_waits(p.ops)
    ops,npad=hazards(ops, opt.get('verbose'))
    ops,size,mis,pads=align8(ops)
    print(f'; hazard nops {npad}, code {size} B, misaligned8 {mis}, align pads {pads}', file=sys.stderr)
    hdr=open('parallel_sum__ssm_conv_s4d__mixer_channel_mlp__prompt.s.ref').read().split('; Override')[0]
    s=hdr+f'''; @launch grid=(256,1,1) block=(256,1,1) lds=163840
.amdgcn_target "amdgcn-amd-amdhsa--gfx950"
.text
.globl {NAME}
.p2align 8
.type {NAME},@function
{NAME}:
'''+render(ops)+f'''.section .rodata,"a"
.p2align 6
.amdhsa_kernel {NAME}
  .amdhsa_next_free_vgpr 512
  .amdhsa_next_free_sgpr 102
  .amdhsa_accum_offset 256
  .amdhsa_group_segment_fixed_size 0
  .amdhsa_kernarg_size 120
  .amdhsa_user_sgpr_count 2
  .amdhsa_user_sgpr_kernarg_segment_ptr 1
  .amdhsa_system_sgpr_workgroup_id_x 1
.end_amdhsa_kernel
'''
    return s

if __name__=='__main__':
    opt={}
    out=sys.argv[1]
    for a in sys.argv[2:]:
        k,_,v=a.partition('='); opt[k]=v if v else True
    open(out,'w').write(build(opt))
```

```python
import sys, struct, math
from asmgen import *

NAME='parallel_sum__ssm_conv_s4d__mixer_channel_mlp__prompt_kernel'
EPO=0; W2F=8192; XNF=1024; HF=2048; YF=0x18000; STAT=32768; AEXT=65536; XNT=0x20000; YB=0x2A0000; W2P=0x520000; HP=0x740000; WSZ=0xE00000
STAMP=0xE00000
OOB=0x80000000
TAG=0x3F803F80
def f2u(x): return struct.unpack('<I',struct.pack('<f',x))[0]
LOG2E=f2u(1.4426950408889634); INV2PI=f2u(1/(2*math.pi)); EPS=f2u(1e-5)
SPIN=20000
SP=[70,72,74,18,4,6,8,10,12,14,16,20,24,28,32,22,26]

class G(Prog):
    def __init__(s, opt):
        super().__init__(); s.opt=opt; s.nl=0; s.w2t={}; s.K1=int(opt.get('K1',64))
    def lab(s,p='L'):
        s.nl+=1; return f'{p}_{s.nl}'
    def stamp(s, name, q=None):
        st=s.opt.get('stamps')
        if not st: return
        l=str(st).split(',')
        if name not in l: return
        r=SP[l.index(name)]
        (q or s).i(f's_memtime s[{r}:{r+1}]')
    def poll(s, tok, reload_fn, check_fn, sleep=2):
        ok=s.lab('Lok'); lp=s.lab('Lsp')
        s.wvm(tok); check_fn(); s.i(f's_cbranch_scc1 {ok}')
        s.push()
        s.i(f's_mov_b32 s96, 0'); s.label(lp)
        s.i(f's_sleep {sleep}'); reload_fn(); s.wvm0(); check_fn()
        s.i(f's_cbranch_scc1 {ok}')
        s.i(f's_add_u32 s96, s96, 1\ns_cmp_lt_u32 s96, {SPIN}\ns_cbranch_scc1 {lp}')
        s.pop(); s.label(ok)

def bf16r(p, dst, src):
    p.i(f'v_cvt_pk_bf16_f32 {dst}, {src}, {src}\nv_and_b32 {dst}, 0xffff0000, {dst}')

def xreduce(p, regs_, tmp, steps):
    for st in steps:
        for k,r in enumerate(regs_):
            t=tmp[k%len(tmp)]
            if st==8: p.i(f'v_add_f32_dpp v{r}, v{r}, v{r} row_ror:8 row_mask:0xf bank_mask:0xf')
            else:
                p.i(f'v_mov_b32 v{t}, v{r}'); p.i(f'v_permlane{st}_swap_b32 v{r}, v{t}'); p.i(f'v_add_f32 v{r}, v{r}, v{t}')

def prologue(p):
    p.i(f'''
    s_load_dwordx16 s[4:19], s[0:1], 0
    s_load_dwordx8 s[20:27], s[0:1], 64
    s_load_dwordx4 s[28:31], s[0:1], 96
    s_load_dwordx2 s[32:33], s[0:1], 112
    s_cmp_lt_u32 s2, 256
    s_cbranch_scc1 L_go
    s_endpgm''')
    p.label('L_go')
    if p.opt.get('stamps') or p.opt.get('dbgt'): p.i('s_memrealtime s[94:95]\ns_memtime s[68:69]')
    p.i(f'''
    v_lshrrev_b32 v1, 6, v0
    v_and_b32 v0, 63, v0
    s_lshr_b32 s35, s2, 3
    v_readfirstlane_b32 s3, v1
    s_and_b32 s34, s2, 7
    v_lshlrev_b32 v1, 4, v0
    ''')
    codepf(p)
    p.i('s_cmp_lt_u32 s35, 4\ns_cbranch_scc1 L_F')

def codepf(p):
    l=p.lab('Lpf'); h=p.lab('Lpc')
    p.i(f's_cmp_lg_u32 s3, {9 if p.opt.get("nopf") else 3}\ns_cbranch_scc1 {l}'); p.push()
    p.i('s_getpc_b64 s[56:57]'); p.label(h)
    p.i(f'''
    s_sub_u32 s56, s56, {h}-L_go
    s_subb_u32 s57, s57, 0
    s_and_b32 s58, s35, 7
    s_mul_i32 s58, s58, 40
    v_min_u32 v2, 39, v0
    v_add_u32 v2, s58, v2
    v_lshlrev_b32 v2, 7, v2
    v_min_u32 v2, L_codeend-L_go-128, v2
    v_mov_b32 v3, s57
    v_add_co_u32 v2, vcc, s56, v2
    v_addc_co_u32 v3, vcc, 0, v3, vcc''')
    p.vm('global_load_dword v255, v[2:3], off')
    p.pop(); p.label(l)

def srd(p, n, lo, size):
    p.i(f's_mov_b32 s{n}, s{lo}\ns_mov_b32 s{n+1}, s{lo+1}\ns_mov_b32 s{n+2}, {size}\ns_mov_b32 s{n+3}, 0x20000')
def srd_a(p):
    srd(p,36,4,2048*1280); srd(p,40,20,640*3456)
def srd_b(p):
    srd(p,44,32,WSZ+(0x100000 if p.opt.get('stamps') else 0)); srd(p,48,28,2048*1280)
    p.i('v_mov_b32 v254, 0'); p.tepo=p.vm('buffer_load_dword v254, v254, s[44:47], 0 offen sc1')

def tile2(p, role):
    if p.opt.get('part','2d')=='tok':
        p.i('''
        s_and_b32 s87, s35, 3
        s_lshl_b32 s58, s34, 2
        s_add_u32 s59, s87, s58
        s_lshr_b32 s58, s35, 2
        s_add_u32 s56, s87, s58
        s_add_u32 s60, s56, 1
        s_and_b32 s60, s60, 3''')
        if role!='F':
            p.i('''
            s_add_u32 s56, s56, 2
            s_and_b32 s56, s56, 3
            s_add_u32 s56, s56, 4
            s_cmp_lt_u32 s58, 3
            s_cselect_b32 s60, s60, s56
            s_sub_u32 s57, s35, 24
            s_cmp_ge_u32 s35, 24
            s_cselect_b32 s60, s57, s60''')
        return
    if role=='F': p.i('s_lshl_b32 s59, s35, 1\ns_mov_b32 s60, s35')
    else:
        p.i('''
        s_sub_u32 s56, s35, 4
        s_mul_i32 s57, s56, 52
        s_lshr_b32 s57, s57, 8
        s_mul_i32 s58, s57, 5
        s_sub_u32 s56, s56, s58
        s_lshl_b32 s59, s57, 1
        s_add_u32 s60, s57, s56
        s_cmp_lt_u32 s56, 2
        s_cselect_b32 s58, 2, 0
        s_cselect_b32 s56, 0, 1
        s_add_u32 s60, s60, s58
        s_add_u32 s59, s59, s56
        s_sub_u32 s56, s35, 24
        s_lshr_b32 s57, s56, 1
        s_add_u32 s57, s57, 1
        s_cmp_ge_u32 s35, 24
        s_cselect_b32 s59, s56, s59
        s_cselect_b32 s60, s57, s60
        s_and_b32 s60, s60, 3''')
    p.i('''
    s_lshr_b32 s56, s34, 1
    s_lshl_b32 s56, s56, 3
    s_add_u32 s59, s59, s56
    s_and_b32 s56, s34, 1
    s_lshl_b32 s56, s56, 2
    s_add_u32 s60, s60, s56''')

def touch(p, v, soff, dst):
    return p.vm(f'buffer_load_dword v{dst}, v{v}, s[44:47], {soff} offen sc1')

def nonce(p):
    p.wvm(p.tepo)
    p.i('v_readfirstlane_b32 s76, v254\ns_mul_i32 s76, s76, 0x19660d\ns_add_u32 s76, s76, 0x3c6ef35f')
def check_all(p, v, n):
    p.i(f'v_cmp_eq_u32 vcc, s76, v{v}')
    if n<64:
        m=((1<<64)-1)^((1<<n)-1)
        if m&0xffffffff: p.i(f's_or_b32 vcc_lo, vcc_lo, {m&0xffffffff:#x}')
        p.i(f's_or_b32 vcc_hi, vcc_hi, {m>>32:#x}')
    p.i('s_cmp_eq_u64 vcc, -1')
def flags1_load(p, v, soff):
    p.i(f'v_lshlrev_b32 v{v}, 2, v0'); return p.vm(f'buffer_load_dword v{v}, v{v}, s[44:47], {soff} offen sc1')
def set_flag(p, soff, v, reps=1, stride=0):
    p.i(f'v_mov_b32 v{v}, s76\nv_mul_u32_u24 v{v+1}, {stride}, v0\ns_mov_b64 exec, {(1<<reps)-1}')
    p.vm(f'buffer_store_dword v{v}, v{v+1}, s[44:47], {soff} offen sc1')
    p.i('s_mov_b64 exec, -1')
class W0:
    def __init__(s,p): s.p=p
    def __enter__(s):
        s.l=s.p.lab('Lw0'); s.p.i(f's_cmp_lg_u32 s3, 0\ns_cbranch_scc1 {s.l}'); s.p.push()
    def __exit__(s,*a): s.p.pop(); s.p.label(s.l)
def w0_load(p, v, soff):
    with W0(p): t=flags1_load(p,v,soff)
    return t
def w0_poll(p, v, soff, n, tok=None, sleep=2):
    with W0(p):
        if tok is None: tok=flags1_load(p,v,soff)
        p.poll(tok, lambda: flags1_load(p,v,soff), lambda: check_all(p,v,n), sleep)
    p.i('s_barrier')

def fentry(p):
    p.label('L_F')
    save=p.reg; p.reg=('F',)
    if p.opt.get('noF'): p.i('s_endpgm')
    p.i(f'''
    s_lshl_b32 s61, s34, 2
    s_add_u32 s61, s61, s35
    s_and_b32 s56, s34, 1
    s_lshr_b32 s57, s34, 1
    s_lshl_b32 s57, s57, 2
    s_add_u32 s57, s57, s35
    s_mul_i32 s62, s56, 14
    s_add_u32 s62, s62, s57
    s_sub_u32 s56, 14, s56
    s_cmp_lt_u32 s57, s56
    s_cselect_b32 s62, s62, 0
    s_cselect_b32 s63, 0, {OOB:#x}''')
    p.i(f'''
    s_and_b32 s64, s3, 1
    s_lshl_b32 s64, s64, 2
    v_lshrrev_b32 v2, 4, v0
    v_and_b32 v3, 15, v0
    v_xor_b32 v8, v3, v2
    v_xor_b32 v8, s64, v8
    v_mul_u32_u24 v9, 1280, v2''')
    for rg in range(4):
        p.i(f'v_xor_b32 v14, {4*rg}, v8\nv_lshl_add_u32 v14, v14, 4, v9\nv_add_u32 v{10+rg}, {4*rg*1280}, v14')
    p.i(f'''
    s_lshl_b32 s56, s61, 2
    s_add_u32 s56, s56, s3
    s_mul_i32 s56, s56, {16*1280}
    s_mul_i32 s65, s3, 20480''')
    tx={}
    p.wds0(); p.stamp('s1'); srd_a(p)
    for cb in range(5):
        for rg in range(4):
            p.i(f's_add_u32 m0, s65, {cb*4096+rg*1024}')
            if rg==0: p.i(f's_add_u32 s57, s56, {cb*256}')
            tx[cb,rg]=p.vm(f'buffer_load_dwordx4 v{10+rg}, s[36:39], s57 offen lds')
    p.i('s_branch L_F2'); p.reg=save
    p.ftx=tx

def fpath(p):
    if not hasattr(p,'ftx'): fentry(p)
    tx=p.ftx
    p.label('L_F2'); p.push('F')
    srd_b(p)
    p.i(f'''
    v_lshrrev_b32 v14, 3, v0
    v_and_b32 v15, 7, v0
    v_mul_u32_u24 v14, 3456, v14
    v_lshl_add_u32 v61, v15, 4, v14
    s_mul_i32 s56, s3, {160*3456}
    s_lshl_b32 s57, s62, 7
    s_add_u32 s56, s56, s57
    s_or_b32 s80, s56, s63''')
    tw=[]
    def w1ld():
        m=len(tw)
        if m<20:
            p.i(f's_add_u32 s57, s80, {m*8*3456}')
            tw.append(p.vm(f'buffer_load_dwordx4 v[{64+4*m}:{67+4*m}], v61, s[40:43], s57 offen'))
    p.i(f's_lshl_b32 s56, s62, 7\nv_lshl_add_u32 v15, v0, 1, s56')
    tb1=p.vm('global_load_ushort v15, v15, s[22:23]')
    p.stamp('f0')
    p.i(f'''
    v_xor_b32 v8, s64, v3
    v_xor_b32 v8, v8, v2
    v_lshlrev_b32 v9, 8, v3
    v_add_u32 v9, s65, v9''')
    for k in range(4):
        p.i(f'v_xor_b32 v14, {4*k}, v8\nv_lshl_add_u32 v{16+k}, v14, 4, v9')
    p.i(f's_mov_b32 s66, {TAG:#x}')
    for k in range(8): p.i(f'v_mov_b32 v{20+k}, 0')
    rd={}
    def rdx(cb):
        p.wvm(tx[cb,3])
        for k in range(4): rd[cb,k]=p.ds(f'ds_read_b128 v[{160+16*(cb%2)+4*k}:{163+16*(cb%2)+4*k}], v{16+k} offset:{cb*4096}')
    rdx(0)
    p.stamp('f1')
    for cb in range(5):
        if cb<4: rdx(cb+1)
        for k in range(4):
            p.wds(rd[cb,k])
            for e in range(4):
                r=160+16*(cb%2)+4*k+e
                p.i(f'v_dot2_f32_bf16 v{20+e}, v{r}, s66, v{20+e}\nv_dot2_f32_bf16 v{24+e}, v{r}, v{r}, v{24+e}')
            if cb>=int(p.opt.get('fw',1)) and (k%2==1 or cb>=2): w1ld()
    p.i('''
    v_add_f32 v20, v20, v21
    v_add_f32 v22, v22, v23
    v_add_f32 v24, v24, v25
    v_add_f32 v26, v26, v27
    v_add_f32 v20, v20, v22
    v_add_f32 v21, v24, v26''')
    p.stamp('f2')
    xreduce(p,[20,21],[22,23],[16,32])
    p.i(f'''
    v_mul_f32 v20, {f2u(1/640):#x}, v20
    v_mul_f32 v21, {f2u(1/640):#x}, v21
    v_fma_f32 v21, -v20, v20, v21
    v_max_f32 v21, 0, v21''')
    w1ld()
    bf16r(p,'v22','v20')
    bf16r(p,'v23','v21')
    p.i(f'v_add_f32 v23, {EPS:#x}, v23'); bf16r(p,'v23','v23')
    w1ld()
    p.i('v_sqrt_f32 v23, v23'); bf16r(p,'v23','v23')
    p.i('''
    v_rcp_f32 v24, v23
    v_sub_f32 v25, v20, v22
    v_mul_f32 v25, v25, v24
    v_mul_f32 v26, v21, v24
    v_mul_f32 v26, v26, v24
    v_mul_f32 v27, v22, v24
    v_sub_f32 v27, 0, v27''')
    w1ld()
    bf16r(p,'v25','v25'); bf16r(p,'v26','v26')
    p.i(f'v_add_f32 v26, {EPS:#x}, v26'); bf16r(p,'v26','v26')
    p.i('v_sqrt_f32 v26, v26'); bf16r(p,'v26','v26')
    p.i('''
    v_mul_f32 v26, v26, v23
    v_fma_f32 v25, v25, v23, v22
    v_rcp_f32 v31, v26''')
    bf16r(p,'v22','v25'); nonce(p); p.i('v_sub_f32 v25, v25, v22\nv_cvt_pk_bf16_f32 v28, -v22, -v25\nv_mov_b32 v29, s76')
    bf16r(p,'v22','v26'); p.i('v_sub_f32 v26, v26, v22\nv_cvt_pk_bf16_f32 v30, v22, v26')
    while len(tw)<int(p.opt.get('fw2',0)): w1ld()
    T1=81920; T2=81920+1024
    p.i(f'''
    s_lshl_b32 s56, s61, 2
    s_add_u32 s56, s56, s3
    s_lshl_b32 s56, s56, 8
    s_add_u32 s56, s56, {STAT}
    s_lshl_b32 s57, s3, 6
    v_lshl_add_u32 v22, v0, 2, s57
    s_mov_b64 exec, 0xffff''')
    p.vm('buffer_store_dwordx4 v[28:31], v1, s[44:47], s56 offen sc1')
    p.i(f'v_add_u32 v22, {T1}, v22')
    p.ds('ds_write_b32 v22, v24'); p.ds('ds_write_b32 v22, v27 offset:256')
    p.i('s_mov_b64 exec, -1')
    p.stamp('a')
    p.wds0(); p.i('s_barrier')
    p.i(f'''
    v_bfe_u32 v23, v0, 2, 3
    v_lshlrev_b32 v23, 5, v23
    v_add_u32 v23, {T1}, v23''')
    for k in range(2): p.ds(f'ds_read_b128 v[{44+4*k}:{47+4*k}], v23 offset:{16*k}')
    for k in range(2): tl=p.ds(f'ds_read_b128 v[{52+4*k}:{55+4*k}], v23 offset:{256+16*k}')
    def colsum():
        p.stamp('c')
        p.i('s_mov_b32 s66, 0x3f80\ns_mov_b32 s67, 0x3f800000')
        for m in range(20):
            if m%4==0: p.wvm(tw[m+3])
            for e in range(4):
                r=64+4*m+e
                c0='0' if m==0 else f'v{32+2*e}'; c1='0' if m==0 else f'v{33+2*e}'
                p.i(f'v_dot2_f32_bf16 v{32+2*e}, v{r}, s66, {c0}\nv_dot2_f32_bf16 v{33+2*e}, v{r}, s67, {c1}')
        for st in (8,16,32):
            if st==8:
                for r in range(32,40): p.i(f'v_add_f32_dpp v{r}, v{r}, v{r} row_ror:8 row_mask:0xf bank_mask:0xf')
            else:
                for r in range(32,40): p.i(f'v_mov_b32 v{r+32}, v{r}')
                for r in range(32,40): p.i(f'v_permlane{st}_swap_b32 v{r}, v{r+32}')
                for r in range(32,40,2): p.i(f'v_pk_add_f32 v[{r}:{r+1}], v[{r}:{r+1}], v[{r+32}:{r+33}]')
        p.i(f'''
        s_lshl_b32 s57, s3, 8
        s_add_u32 s57, s57, {T2}
        v_lshl_add_u32 v22, v0, 5, s57
        s_mov_b64 exec, 0xff''')
        p.ds('ds_write_b128 v22, v[32:35]'); p.ds('ds_write_b128 v22, v[36:39] offset:16')
        p.i('s_mov_b64 exec, -1'); p.wds0(); p.i('s_barrier')
        with W0(p):
            p.i(f'v_lshlrev_b32 v22, 2, v0\nv_add_u32 v22, {T2}, v22')
            tt=[p.ds(f'ds_read_b32 v{32+k}, v22 offset:{256*k}') for k in range(4)]
            p.wds(tt[3])
            p.i('v_add_f32 v32, v32, v33\nv_add_f32 v34, v34, v35\nv_add_f32 v32, v32, v34')
            p.i('v_cvt_pk_bf16_f32 v36, v32, v32\nv_and_b32 v33, 0xffff0000, v36\nv_sub_f32 v33, v32, v33\nv_cvt_pk_bf16_f32 v37, v33, v33')
            p.wvm(tb1)
            p.i(f'''
            v_lshl_add_u32 v38, v15, 16, v15
            v_mov_b32 v39, s76
            s_lshl_b32 s56, s62, 10
            s_add_u32 s56, s56, {AEXT}
            s_or_b32 s56, s56, s63''')
            p.vm('buffer_store_dwordx4 v[36:39], v1, s[44:47], s56 offen sc1')
        p.stamp('b')
    tile2(p,'F'); p.i(f's_lshl_b32 s79, s34, 8\ns_add_u32 s79, s79, {W2F}')
    p.i(f'''
    v_bfe_u32 v8, v0, 2, 2
    v_and_b32 v9, 1, v0
    v_lshl_add_u32 v8, v9, 3, v8
    v_bfe_u32 v9, v0, 4, 1
    v_bfe_u32 v22, v0, 1, 1
    v_lshl_add_u32 v9, v9, 1, v22
    v_lshlrev_b32 v14, 2, v22
    v_xor_b32 v14, v14, v8
    v_xor_b32 v14, s3, v14
    v_mul_u32_u24 v9, 20480, v9
    v_lshl_add_u32 v9, v8, 8, v9
    v_lshrrev_b32 v22, 5, v0
    v_lshl_add_u32 v9, v22, 3, v9
    v_and_b32 v24, 31, v0
    v_lshlrev_b32 v24, 4, v24
    v_lshl_add_u32 v24, v22, 14, v24
    s_lshl_b32 s81, s3, 15
    s_lshl_b32 s57, s61, 9
    s_add_u32 s81, s81, s57
    s_add_u32 s81, s81, {XNT}''')
    for k in range(4): p.i(f'v_xor_b32 v22, {4*k}, v14\nv_lshl_add_u32 v{16+k}, v22, 4, v9')
    tn={}
    def nrd(t):
        b=160+4*(t%4)
        p.ds(f'ds_read_b64_tr_b16 v[{b}:{b+1}], v{16+(t&3)} offset:{(t>>2)*4096}')
        tn[t]=p.ds(f'ds_read_b64_tr_b16 v[{b+2}:{b+3}], v{16+((t&3)^1)} offset:{(t>>2)*4096+1024}')
    TC=int(p.opt.get('ftc',10))
    for t in range(3): nrd(t)
    p.wds(tl)
    for t in range(20):
        if t==TC:
            while len(tw)<20: w1ld()
            colsum()
        if t+3<20: nrd(t+3)
        b=160+4*(t%4); o=184+4*(t%2)
        p.wds(tn[t])
        for k in range(4):
            p.i(f'v_lshlrev_b32 v{176+2*k}, 16, v{b+k}\nv_and_b32 v{177+2*k}, 0xffff0000, v{b+k}')
        w1ld()
        for k in range(4):
            p.i(f'v_pk_fma_f32 v[{176+2*k}:{177+2*k}], v[{176+2*k}:{177+2*k}], v[{44+2*k}:{45+2*k}], v[{52+2*k}:{53+2*k}]')
        for k in range(4): p.i(f'v_cvt_pk_bf16_f32 v{o+k}, v{176+2*k}, v{177+2*k}')
        p.i(f's_add_u32 s57, s81, {t*8*16384}')
        txn=p.vm(f'buffer_store_dwordx4 v[{o}:{o+3}], v24, s[44:47], s57 offen sc1')
    p.i(f's_lshl_b32 s58, s61, 2\ns_add_u32 s58, s58, {XNF}')
    p.wvm(txn); p.i('s_barrier')
    with W0(p): set_flag(p,'s58',60,8,128)
    p.stamp('d')
    if p.opt.get('stop')=='F':
        p.i('s_branch L_fin')
    else:
        if p.opt.get('stop')=='K': p.i('s_branch L_fin')
        w0_poll(p,60,'s79',64,None,4)
        w2p_setup(p)
        for k in range(p.K1): w2p_load(p,k)
        p.i('s_branch L_noconv')
    p.pop()

def w2reg(it,m):
    k=W2ORD.index(it)*5+m
    if k<64: return f'a[{4*k}:{4*k+3}]'
    return f'v[{232+4*(k-64)}:{235+4*(k-64)}]'
W2ORD=list(range(14))
def step_bases(p, base, last, stride):
    p.i(f'''
    s_add_u32 s{last}, s{base}, {13*stride}
    s_cmp_lt_u32 s3, 2
    s_cselect_b32 s{last}, s{last}, {OOB:#x}''')
def step_soff(p, it, stride, first, base, last, tmp):
    if it==13: return f's{last}'
    if it==0: return f's{base}'
    if first: p.i(f's_add_u32 s{tmp}, s{base}, {it*stride}')
    return f's{tmp}'
def w2p_setup(p):
    p.i(f'''
    s_mul_i32 s90, s60, 276480
    s_mul_i32 s91, s3, 5120
    s_add_u32 s90, s90, s91
    s_add_u32 s90, s90, {W2P}
    v_add_u32 v2, 0x1000, v1''')
    step_bases(p,90,77,20480)
W2T={}
def w2p_load(p,k,first=False):
    it=W2ORD[k//5]; m=k%5
    so=step_soff(p,it,20480,m==0 or first,90,77,92)
    return p.vm(f'buffer_load_dwordx4 {w2reg(it,m)}, v{2 if m==4 else 1}, s[44:47], {so} offen '+(f'offset:{m*1024} ' if 0<m<4 else '')+'sc1', p.w2t.setdefault(k,Tok(f'w2_{k}')))

def finish(p):
    p.label('L_fin')
    if p.opt.get('dbgt'):
        base=int(p.opt['dbgt'])
        p.wvm0(); p.i('s_memrealtime s[96:97]\ns_memtime s[62:63]'); p.wds0()
        p.i(f's_sub_u32 s56, s2, {base}\ns_lshl_b32 s57, s3, 8\ns_add_u32 s56, s56, s57\ns_cmp_lt_u32 s56, 8\ns_cbranch_scc0 L_fin2\ns_lshl_b32 s56, s56, 3\nv_mov_b32 v4, s56\nv_mov_b32 v6, s94\ns_sub_u32 s96, s96, s94\ns_sub_u32 s62, s62, s68\ns_lshl_b32 s96, s96, 16\ns_or_b32 s96, s96, s62\nv_mov_b32 v7, s96\ns_mov_b64 exec, 1')
        p.vm('global_store_dwordx2 v4, v[6:7], s[30:31]'); p.wvm0()
        p.label('L_fin2')
    if p.opt.get('stamps'):
        p.wvm0()
        p.i('s_memtime s[62:63]\ns_memrealtime s[96:97]'); p.wds0()
        src=[f's{r}' for r in SP]+['s62']
        p.i(f's_lshl_b32 s56, s2, 2\ns_add_u32 s56, s56, s3\ns_lshl_b32 s56, s56, 7\ns_add_u32 s56, s56, {STAMP}\nv_mov_b32 v9, 0\ns_mov_b64 exec, 1')
        for q in range(5):
            for e in range(4):
                k=4*q+e
                if k<18: p.i(f's_sub_u32 s57, {src[k]}, s68\nv_mov_b32 v{4+e}, s57')
                else: p.i(f'v_mov_b32 v{4+e}, s{94 if k==18 else 96}')
            p.vm(f'buffer_store_dwordx4 v[4:7], v9, s[44:47], s56 offen offset:{16*q}')
            p.i('s_nop 1')
    p.i('s_endpgm')

def build(opt):
    import gen_g
    p=G(opt)
    prologue(p)
    if opt.get('ffirst'):
        p.i('s_branch L_G'); fpath(p); p.label('L_G'); p.push('G'); gen_g.gpath(p); p.pop(); finish(p)
    else:
        p.push('G'); gen_g.gpath(p); p.pop(); finish(p); fpath(p)
    p.label('L_codeend')
    ops=resolve_waits(p.ops)
    ops,npad=hazards(ops, opt.get('verbose'))
    ops,size,mis,pads=align8(ops)
    print(f'; hazard nops {npad}, code {size} B, misaligned8 {mis}, align pads {pads}', file=sys.stderr)
    hdr=open('parallel_sum__ssm_conv_s4d__mixer_channel_mlp__prompt.s.ref').read().split('; Override')[0]
    s=hdr+f'''; @launch grid=(256,1,1) block=(256,1,1) lds=163840
.amdgcn_target "amdgcn-amd-amdhsa--gfx950"
.text
.globl {NAME}
.p2align 8
.type {NAME},@function
{NAME}:
'''+render(ops)+f'''.section .rodata,"a"
.p2align 6
.amdhsa_kernel {NAME}
  .amdhsa_next_free_vgpr 512
  .amdhsa_next_free_sgpr 102
  .amdhsa_accum_offset 256
  .amdhsa_group_segment_fixed_size 0
  .amdhsa_kernarg_size 120
  .amdhsa_user_sgpr_count 2
  .amdhsa_user_sgpr_kernarg_segment_ptr 1
  .amdhsa_system_sgpr_workgroup_id_x 1
.end_amdhsa_kernel
'''
    return s

if __name__=='__main__':
    opt={}
    out=sys.argv[1]
    for a in sys.argv[2:]:
        k,_,v=a.partition('='); opt[k]=v if v else True
    open(out,'w').write(build(opt))
```

```python
from gen import *
from gen_g import spread
K0=4736; K1=8896; TB=13056; DUM=14400
PST=65536; YST=126976; XST=139776; OST=152064
CA=8; CB=40; CB2=72; CACC=80
HR=112; G2=8; NH2=20
I0=192; I1=196
HV=204; XV=208; YV=211; YW=214; XR=215; YR=216; PW=218; PR=219; OW=222; YFV=223; T0=224; YE=226; CAA=227; CBA=231
UW=24
def hreg2(it,i): return HR+4*((it*4+i)%NH2)

def conv_addr(q):
    q.i(f'''
    s_lshl_b32 s57, s3, 14
    v_and_b32 v60, 15, v0
    s_add_u32 s56, s57, {TB}
    v_lshrrev_b32 v61, 4, v0
    v_lshrrev_b32 v62, 5, v0
    v_bfe_u32 v63, v0, 4, 1
    v_cmp_gt_u32 s[54:55], 32, v0
    v_lshl_add_u32 v40, v60, 4, s56
    v_lshlrev_b32 v41, 3, v60
    v_lshl_add_u32 v40, v62, 8, v40
    v_lshlrev_b32 v59, 2, v60
    v_lshl_add_u32 v40, v63, 3, v40
    v_add_u32 v59, {784-528}, v59
    v_mov_b32 v42, 60
    v_cndmask_b32 v41, v59, v41, s[54:55]
    v_cndmask_b32 v42, v42, 0, s[54:55]
    v_lshl_add_u32 v41, v63, 7, v41
    v_lshlrev_b32 v53, 1, v60
    v_add_u32 v41, s56, v41
    v_lshl_add_u32 v53, v61, 7, v53
    v_add_u32 v42, v42, v41
    v_mov_b32 v59, {DUM-TB-1040}
    v_mov_b32 v44, s56
    v_cndmask_b32 v43, v59, v53, s[54:55]
    v_lshlrev_b32 v45, 4, v0
    v_add_u32 v43, s56, v43
    v_lshlrev_b32 v58, 3, v0
    v_add_u32 v45, 16, v45
    v_add_u32 v58, {528-256}, v58
    v_lshl_add_u32 v47, v0, 2, s56
    v_cndmask_b32 v45, v58, v45, s[54:55]
    v_add_u32 v48, 0x400, v47
    v_add_u32 v45, s56, v45
    v_and_b32 v58, 1, v0
    v_bfe_u32 v52, v0, 1, 1
    v_lshlrev_b32 v58, 4, v58
    v_mul_u32_u24 v52, {K1-K0}, v52
    v_lshlrev_b32 v51, 5, v0
    v_add3_u32 v52, v52, v58, s57
    s_mul_i32 s56, s3, {16384+32}
    v_add_u32 v52, {K0+4096}, v52
    v_add_u32 v58, s56, v1
    v_lshlrev_b32 v{CBA}, 5, v60
    v_cndmask_b32 v52, v52, v58, s[54:55]
    v_cmp_ge_u32 s[54:55], 32, v0
    v_lshl_add_u32 v{CBA}, v61, 4, v{CBA}
    v_add_u32 v46, -2, v45
    v_add_u32 v{CBA}, s56, v{CBA}
    v_cndmask_b32 v53, v59, v53, s[54:55]
    v_cndmask_b32 v46, v45, v46, s[54:55]
    s_add_u32 s56, s57, {TB}
    v_lshrrev_b32 v58, 1, v60
    v_add_u32 v53, s56, v53
    s_add_u32 s56, s57, {K0+255*16}
    v_lshlrev_b32 v61, 2, v61
    v_sub_u32 v49, s56, v1
    s_sub_u32 s56, s56, {128*16+16}
    v_sub_u32 v61, v61, v58
    v_add_u32 v50, -1024, v49
    v_sub_u32 v51, s56, v51
    v_lshlrev_b32 v61, 2, v61
    v_and_b32 v58, 1, v60
    v_and_b32 v{UW}, 3, v0
    v_xor_b32 v58, 1, v58
    v_mul_u32_u24 v{UW}, {16384+32}, v{UW}
    v_mul_u32_u24 v58, {K1-K0}, v58
    v_lshrrev_b32 v59, 2, v0
    v_add3_u32 v61, v61, v58, s57
    s_lshl_b32 s56, s3, 10
    v_lshl_add_u32 v{UW}, v59, 4, v{UW}
    s_add_u32 s56, s56, 512
    s_mov_b32 s98, 0x01000302
    v_add_u32 v{UW}, s56, v{UW}
    s_mov_b32 s99, 0x03020504
    s_mov_b32 s100, 0x01000100
    s_mov_b32 s101, 0x03020302
    s_mov_b32 s52, 0x01000504''')
    for g2 in range(4): q.i(f'v_add_u32 v{CAA+g2}, {K0+4*(1015-128*(2*g2+1)-112)}, v61')

def expand(q):
    q.i('''
    v_cmp_eq_u32 s[54:55], 0, v0
    v_mov_b32 v60, 0
    v_mov_b32 v61, 0
    v_cndmask_b32 v39, 0, v39, s[54:55]
    v_mov_b32 v62, 0
    v_add_f32 v26, v26, v39
    v_mov_b32 v63, 0''')
    for t in range(3):
        q.i(f'v_cvt_pk_bf16_f32 v{54+2*t}, v{26+4*t}, v{27+4*t}\nv_cvt_pk_bf16_f32 v{55+2*t}, v{28+4*t}, v{29+4*t}')
    q.ds('ds_write_b128 v44, v[60:63]')
    q.ds('ds_write_b64 v40, v[54:55] offset:16')
    q.ds('ds_write_b32 v41, v56 offset:528'); q.ds('ds_write_b32 v42, v57 offset:532')
    q.ds('ds_write_b16 v53, v58 offset:1040'); q.ds('ds_write_b16_d16_hi v43, v58 offset:1072')
    q.ds('ds_write_b16 v43, v59 offset:1104'); q.ds('ds_write_b16_d16_hi v43, v59 offset:1136')
    q.ds('ds_read_b64 v[8:9], v45'); q.ds('ds_read_b64 v[10:11], v45 offset:8'); ta=q.ds('ds_read_u16 v12, v46')
    tb=q.ds('ds_read2_b32 v[14:15], v47 offset0:196 offset1:197')
    tc=q.ds('ds_read2_b32 v[16:17], v48 offset0:4 offset1:5')
    q.ds('ds_write_b128 v52, v[60:63]')
    SW,LH,LL,HH,L2=98,99,100,101,52
    P=lambda d,a,b,s_: q.i(f'v_perm_b32 v{d}, v{a}, v{b}, s{s_}')
    q.wds(tc)
    P(40,15,15,LL);P(41,14,14,HH);P(42,14,14,SW);P(43,14,14,LL)
    q.ds('ds_write_b128 v50, v[40:43]')
    P(56,15,14,LH);P(57,14,14,HH);P(58,14,14,LL);P(59,14,14,LL)
    q.ds(f'ds_write_b128 v50, v[56:59] offset:{K1-K0}')
    P(28,16,16,HH);P(29,16,16,SW);P(30,16,16,LL);P(31,16,16,LL)
    q.ds('ds_write_b128 v51, v[28:31] offset:16')
    P(32,16,16,HH);P(33,16,16,LL);P(34,16,16,LL);P(35,16,16,LL)
    q.ds(f'ds_write_b128 v51, v[32:35] offset:{K1-K0+16}')
    P(40,17,17,LL);P(41,17,17,LL);P(42,16,16,HH);P(43,16,16,HH)
    q.ds('ds_write_b128 v51, v[40:43]')
    P(56,17,17,LL);P(57,17,16,LH);P(58,16,16,HH);P(59,16,16,HH)
    q.ds(f'ds_write_b128 v51, v[56:59] offset:{K1-K0}')
    P(28,11,11,SW);P(29,10,10,SW);P(30,9,9,SW);P(31,8,8,SW)
    P(32,11,10,LH);P(33,10,9,LH);P(34,9,8,LH);P(35,8,12,L2)
    q.i('s_mov_b32 exec_lo, 0')
    P(28,10,9,LH);P(29,9,9,LL);P(30,9,8,LH);P(31,8,8,LL)
    q.i('s_mov_b64 exec, -1')
    q.ds('ds_write_b128 v49, v[28:31]')
    q.i('s_mov_b32 exec_lo, 0')
    P(32,9,9,SW);P(33,9,9,LL);P(34,8,8,SW)
    q.i('s_mov_b64 exec, -1')
    q.ds(f'ds_write_b128 v49, v[32:35] offset:{K1-K0}')

def ustage(p,q,S):
    p.stamp('u0',q); q.wvm(S.tu); p.stamp('u1',q)
    for m in range(4): q.ds(f'ds_write_b128 v{UW}, a[{240+4*m}:{243+4*m}] offset:{256*m}')

def setup2(p):
    p.i(f'''
    s_mul_i32 s88, s59, {4*55296}
    s_lshl_b32 s57, s3, 10
    v_lshrrev_b32 v60, 5, v0
    s_add_u32 s88, s88, s57
    s_lshr_b32 s56, s3, 1
    s_add_u32 s88, s88, {HP}
    s_lshl_b32 s56, s56, 31
    s_add_u32 s89, s88, {13*4096}
    s_lshl_b32 s20, s59, 12
    s_or_b32 s89, s89, s56
    s_add_u32 s20, s20, {HF}
    v_lshlrev_b32 v60, 31, v60''')
    for i in range(4):
        p.i(f's_add_u32 s56, s3, {1+i}\ns_and_b32 s56, s56, 3\ns_mul_i32 s56, s56, 55296\nv_add_u32 v{HV+i}, s56, v1')
    p.i(f'''
    s_lshl_b32 s21, s59, 2
    s_mul_i32 s57, s60, 160
    s_add_u32 s21, s21, s3
    s_mov_b32 s56, 0x199a
    s_mul_i32 s21, s21, {16*1280}
    v_add_u32 v62, 64, v0
    s_add_u32 s21, s21, s57
    v_add_u32 v63, 0x80, v0
    v_mul_u32_u24 v58, s56, v0
    v_mul_u32_u24 v59, s56, v62
    v_mul_u32_u24 v61, s56, v63
    v_lshrrev_b32 v58, 16, v58
    v_lshrrev_b32 v59, 16, v59
    v_lshrrev_b32 v61, 16, v61
    v_mul_u32_u24 v58, {1280-160}, v58
    v_mul_u32_u24 v59, {1280-160}, v59
    v_mul_u32_u24 v61, {1280-160}, v61
    v_add_u32 v{XV}, v1, v58
    v_lshl_add_u32 v{XV+1}, v62, 4, v59
    v_lshl_add_u32 v{XV+2}, v63, 4, v61
    v_lshrrev_b32 v61, 3, v0
    v_or_b32 v{XV+2}, v{XV+2}, v60
    v_and_b32 v62, 7, v0
    s_mul_i32 s24, s60, 80
    v_lshlrev_b32 v62, 4, v62
    s_mul_i32 s56, s3, 20
    v_lshl_add_u32 v{YV}, v61, 12, v62
    s_add_u32 s24, s24, s56
    v_mul_u32_u24 v61, 160, v61
    s_lshl_b32 s25, s24, 7
    v_add_u32 v{YV+1}, 0x8000, v{YV}
    s_lshl_b32 s24, s24, 12
    v_add_u32 v{YV+2}, 0x10000, v{YV}
    s_lshl_b32 s56, s59, 7
    v_and_b32 v62, 3, v0
    s_add_u32 s24, s24, s56
    v_or_b32 v{YV+2}, v{YV+2}, v60
    s_add_u32 s24, s24, {YB}
    v_lshlrev_b32 v63, 5, v62
    s_add_u32 s25, s25, {YF}
    v_bfe_u32 v60, v0, 2, 1
    s_mul_i32 s56, s3, {20*160}
    v_lshl_add_u32 v63, v60, 4, v63
    s_add_u32 s56, s56, {YST}
    v_min_u32 v{YFV}, 19, v0
    v_add3_u32 v{YW}, v61, v63, s56
    s_mul_i32 s56, s3, 15360
    v_lshlrev_b32 v{YFV}, 7, v{YFV}
    s_add_u32 s56, s56, {PST}
    v_and_b32 v60, 15, v0
    v_add_u32 v{PW}, s56, v1
    s_mul_i32 s61, s3, 3072
    v_lshrrev_b32 v61, 4, v0
    s_add_u32 s61, s61, {XST}
    v_mul_u32_u24 v60, 160, v60
    s_mul_i32 s56, s3, 2560
    v_lshl_add_u32 v{XR}, v61, 4, v60
    s_add_u32 s53, s56, {OST}
    v_lshl_add_u32 v{OW}, v61, 3, v60
    v_bfe_u32 v60, v0, 2, 2
    v_add_u32 v{XR}, s61, v{XR}
    v_add_u32 v{OW}, s53, v{OW}
    v_lshl_add_u32 v63, v61, 3, v60
    s_lshl_b32 s56, s3, 5
    v_mul_u32_u24 v63, 160, v63
    s_add_u32 s56, s56, {YST}
    v_lshl_add_u32 v63, v62, 3, v63
    v_lshrrev_b32 v60, 5, v0
    v_add_u32 v{YR}, s56, v63
    v_mul_u32_u24 v60, {16*160}, v60
    s_lshl_b32 s56, s86, 2
    v_sub_u32 v{YR+1}, v{YR}, v60
    s_add_u32 s56, s56, s3
    v_lshlrev_b32 v{YE}, 4, v62
    s_lshl_b32 s28, s56, 12
    v_bfe_u32 v60, v0, 2, 3
    s_lshl_b32 s29, s56, 7
    v_lshl_add_u32 v{YE}, v60, 7, v{YE}
    s_add_u32 s28, s28, {YB}
    v_lshrrev_b32 v60, 5, v0
    s_add_u32 s29, s29, {YF}
    v_lshl_add_u32 v{YE}, v60, 6, v{YE}''')
    for i in range(3):
        p.i(f's_sub_u32 s56, s3, {1+i}\ns_and_b32 s56, s56, 3\ns_mul_i32 s56, s56, 15360\ns_add_u32 s56, s56, {PST+5120*i}\nv_add_u32 v{PR+i}, s56, v1')
def ident(p):
    p.i(f'''
    v_and_b32 v200, 15, v0
    v_bfe_u32 v201, v0, 4, 1
    v_cmp_gt_u32 s[54:55], 32, v0
    v_lshlrev_b32 v201, 3, v201
    v_mov_b32 v203, 0x3f80
    v_sub_u32 v200, v200, v201
    v_and_b32 v201, 1, v200
    v_ashrrev_i32 v200, 1, v200
    v_lshlrev_b32 v201, 4, v201
    v_lshlrev_b32 v203, v201, v203''')
    for d in range(4):
        p.i(f'v_cmp_eq_u32 s[100:101], {d}, v200\nv_cndmask_b32 v202, 0, v203, s[100:101]\nv_cndmask_b32 v{I0+d}, 0, v202, s[54:55]\nv_sub_u32 v{I1+d}, v202, v{I0+d}')
def xstage(p,S,t):
    p.i(f's_add_u32 m0, s61, {1024*t}')
    p.vm(f'buffer_load_dwordx4 v{XV+t}, s[36:39], s21 offen lds', S.txs if t==2 else None)
def h_load2(p,S,it,i):
    so=step_soff(p,it,4096,i==0,88,89,91)
    if p.opt.get('hfake'): so='s88'
    r=hreg2(it,i)
    return p.vm(f'buffer_load_dwordx4 v[{r}:{r+3}], v{HV+i}, s[44:47], {so} offen sc1', S.ht.setdefault((it,i),Tok(f'h{it},{i}')))

def conv(p,S):
    opt=p.opt
    S.ht={}; S.txs=Tok('xs')
    NPRE=int(opt.get('npre',16))
    p.push('cv')
    k0=S.w2next
    p.i('v_lshlrev_b32 v72, 16, v25\nv_lshlrev_b32 v73, 16, v25\nv_lshlrev_b32 v74, 16, v25\nv_lshlrev_b32 v75, 16, v25')
    p.wds0(); p.i('s_barrier')
    p.stamp('e')
    ta={};tb={}
    def breg(j,c): return (CB+4*j) if (j>=2 or c%2==0) else CB2+4*j
    def rdA(q,g,c):
        o=128*(1-(g&1))+16*(7-c); r=CA+4*g
        q.ds(f'ds_read2_b32 v[{r}:{r+1}], v{CAA+g//2} offset0:{o} offset1:{o+1}')
        ta[g,c]=q.ds(f'ds_read2_b32 v[{r+2}:{r+3}], v{CAA+g//2} offset0:{o+2} offset1:{o+3}')
    def rdB(q,j,c):
        r=breg(j,c); tb[j,c]=q.ds(f'ds_read_b128 v[{r}:{r+3}], v{CBA} offset:{480+512*j-64*c}')
    rdA(p,0,0)
    for j in range(7,-1,-1): rdB(p,j,0)
    groups=[]
    for c in range(8):
        for g in range(8):
            for j in range(7-g,-1,-1):
                q=Sub(); n=g+j; a=CACC+4*n
                if c>0:
                    if g==0 and j==7: q.wds(tb[3,c])
                    if g==0 and j==2: q.wds(tb[2,c])
                    if g==5 and j==2: q.wds(ta[7,c])
                elif g==0 and j in (7,3): q.wds(tb[j-3,0])
                elif g==1 and j==6: q.wds(ta[3,0])
                elif g==4 and j==3: q.wds(ta[7,0])
                q.wds(ta[g,c]); q.wds(tb[j,c])
                q.i(f'v_mfma_f32_16x16x32_bf16 v[{a}:{a+3}], v[{CA+4*g}:{CA+4*g+3}], v[{breg(j,c)}:{breg(j,c)+3}], '+('v[72:75]' if (c==0 and g==0) else f'v[{a}:{a+3}]'))
                if c==0 and g==0 and j>=1: rdA(q,8-j,0)
                if c<7:
                    if j==7-g and j>=2: rdB(q,j,c+1)
                    if j==0: rdA(q,g,c+1)
                    if g==3 and j in (2,3): rdB(q,3-j,c+1)
                groups.append(q.ops)
    side={}
    def at(g,fn): side.setdefault(g,[]).append(fn)
    def hf(p): p.stamp('h0'); p.wvm(S.th); p.stamp('h1'); set_flag(p,'s97',T0)
    at(int(opt.get('ghf',24)),hf)
    stp=float(opt.get('cstep',4.2)); gp=int(opt.get('gpoll',220)); K1=p.K1
    for g in (8,24,36,48,72,96,120,168,240): at(g,lambda p,g=g: p.stamp(f'c{g}'))
    x=Sub(); ident(x)
    Q=list(x.ops); gq=int(opt.get('gq',10))
    gl=int(opt.get('glead',40))
    def hs(p):
        while Q: p.add(Q.pop(0))
        S.tf=w0_load(p,T0,'s20',28)
    at(gp-gl,hs)
    def hp(p):
        p.stamp('p0'); w0_poll(p,T0,'s20',28,S.tf); p.stamp('p1')
    at(gp,hp)
    g=float(opt.get('cg0',0)); k=k0
    while k<K1 and g<gp:
        if not opt.get('now2') or k>=K1-6: at(int(g),lambda p,k=k: w2p_load(p,k,True))
        else: p.w2t[k]=S.th
        k+=1; g+=stp
    g=max(g,gp)
    rest=[('h',j) for j in range(NPRE)]+[('w',j) for j in range(k,K1)]
    st2=min(stp,(287-g)/len(rest))
    for n,(t,j) in enumerate(rest):
        if t=='h': at(int(g),lambda p,j=j: h_load2(p,S,j//4,j%4))
        else: at(int(g),lambda p,j=j,f=(j==k): w2p_load(p,j,f))
        g+=st2
    for g,grp in enumerate(groups):
        for o in grp: p.add(o)
        for fn in side.get(g,[]): fn(p)
        if g>=gq and g not in side:
            for _ in range(max(0,2-sum(o.kind=='ds' for o in grp))):
                if Q: p.add(Q.pop(0))
    p.stamp('f')
    for n in range(0,8,2):
        o=12+2*n
        for u in range(2):
            a=CACC+4*(n+u); p.i(f'v_cvt_pk_bf16_f32 v{o+2*u}, v{a}, v{a+1}\nv_cvt_pk_bf16_f32 v{o+2*u+1}, v{a+2}, v{a+3}')
        p.i(f'v_permlane16_swap_b32 v{o}, v{o+2}\nv_permlane16_swap_b32 v{o+1}, v{o+3}') if False else None
    for n in range(0,8,2):
        o=12+2*n
        p.i(f'v_permlane16_swap_b32 v{o}, v{o+2}\nv_permlane16_swap_b32 v{o+1}, v{o+3}')
        S.ty=p.vm(f'buffer_store_dwordx4 v[{o}:{o+3}], v{YE}, s[44:47], s28 offen '+(f'offset:{512*n} ' if n else '')+'sc1')
    p.i('s_nop 1\ns_branch L_g2'); p.pop()
    p.label('L_skipconv'); p.push('nc')
    ident(p)
    p.stamp('h0'); p.wvm(S.th); p.stamp('h1'); set_flag(p,'s97',T0)
    KN=min(p.K1,S.w2next+int(opt.get('kn',64)))
    for k in range(S.w2next,KN): w2p_load(p,k,k==S.w2next)
    p.stamp('p0'); w0_poll(p,T0,'s20',28,None,int(opt.get('slh',24))); p.stamp('p1')
    k=KN
    for j in range(NPRE):
        h_load2(p,S,j//4,j%4)
        if j>=4 and k<p.K1: w2p_load(p,k,k==KN); k+=1
    while k<p.K1: w2p_load(p,k,k==KN); k+=1
    p.i('s_branch L_g2')
    p.pop()
    p.label('L_noconv'); p.push()
    p.i('s_mov_b32 s93, 1')
    setup2(p); ident(p)
    p.stamp('p0'); w0_poll(p,T0,'s20',28,None,int(opt.get('slh',24))); p.stamp('p1')
    for k in range(NPRE): h_load2(p,S,k//4,k%4)
    p.pop()
    p.label('L_g2')
    S.hnext=NPRE

def yfl(p): return p.vm(f'buffer_load_dword v{T0}, v{YFV}, s[44:47], s25 offen sc1')
def gemm2(p,S):
    opt=p.opt
    if opt.get('stop')=='Y':
        p.i('s_cmp_eq_u32 s93, 0\ns_cbranch_scc0 L_fin'); p.wvm0(); set_flag(p,'s29',T0); p.wvm0(); return
    p.stamp('g')
    acc=lambda i,m: G2+20*i+4*m
    NT=int(opt.get('nt',3)); N0=14-NT; G0=20*N0; K1=p.K1
    order=[(it,i) for it in range(N0) for i in range(4)]+[(it,i) for i in range(4) for it in range(N0,14)]
    groups=[]
    ht=lambda it,i: S.ht.setdefault((it,i),Tok(f'h{it},{i}'))
    wt=lambda k: p.w2t.setdefault(k,Tok(f'w2_{k}'))
    for (it,i) in order:
        for m in range(5):
            q=Sub()
            if m==0 and it<N0 and i==0: q.wvm(wt(5*it+4))
            if m==0 and it<N0 and i%2==0: q.wvm(ht(it,i+1))
            if m==0 and it==N0:
                if i==0: q.wvm(wt(69))
                q.wvm(ht(13,i))
            a=acc(i,m); r=hreg2(it,i)
            q.i(f'v_mfma_f32_16x16x32_bf16 v[{a}:{a+3}], {w2reg(it,m)}, v[{r}:{r+3}], '+('0' if it==0 else f'v[{a}:{a+3}]'))
            groups.append(q.ops)
    side={}
    def at(g,fn): side.setdefault(g,[]).append(fn)
    st=float(opt.get('gstep',4.0))
    while True:
        L=sorted([(k//5,0,k) for k in range(K1,70)]+[(k//4,1,k) for k in range(S.hnext,56)])
        g=0.0; plan=[]; ok=True
        while L:
            c=[e for e in L if e[1]==0 or e[2]<NH2 or 5*(e[2]-NH2)+4<=g]
            if not c or (c[0]!=L[0] and c[0][0]>L[0][0]+4): g+=1; continue
            e=c[0]; L.remove(e); plan.append((int(g),e))
            if g>=min(20*e[0],G0)-int(opt.get('gmarg',24)): ok=False
            g+=st
        if ok: break
        st-=0.1
    for gg,e in plan:
        if e[1]: at(gg,lambda p,k=e[2]: h_load2(p,S,k//4,k%4))
        else: at(gg,lambda p,k=e[2]: w2p_load(p,k,k==K1))
    glast=int(g)
    def yf(p):
        l=p.lab('Lyf'); p.i(f's_cmp_eq_u32 s93, 0\ns_cbranch_scc0 {l}'); p.push(); p.wvm(S.ty); set_flag(p,'s29',T0); p.pop(); p.label(l)
    at(int(opt.get('gyf',30)),yf)
    for gg in (20,60,120,200,240): at(gg-1,lambda p,gg=gg: p.stamp(f'g{gg}'))
    gx=int(opt.get('gx',glast))
    for t in range(3): at(gx+2*t,lambda p,t=t: xstage(p,S,t))
    gy=int(opt.get('gy',max(glast+6,196)))
    def y0(p): S.tf=yfl(p)
    at(gy,y0)
    def y1(p):
        p.stamp('y0')
        p.poll(S.tf, lambda: yfl(p), lambda: check_all(p,T0,64), int(opt.get('sly',16)))
        p.stamp('y1')
        for t in range(3): S.tyl=p.vm(f'buffer_load_dwordx4 v[{88+4*t}:{91+4*t}], v{YV+t}, s[44:47], s24 offen sc1')
        p.wvm(S.txs)
        S.txr=[p.ds(f'ds_read_b128 v[{100+4*t}:{103+4*t}], v{XR} offset:{64*t}') for t in range(3)]
    gy1=gy+int(opt.get('gyd',30))
    at(gy1,y1)
    for m in range(5):
        def xm(p,m=m):
            p.wds(S.txr[2])
            p.i(f'v_mfma_f32_16x16x32_bf16 v[{acc(3,m)}:{acc(3,m)+3}], v[{I1 if m&1 else I0}:{(I1 if m&1 else I0)+3}], v[{100+4*(m>>1)}:{103+4*(m>>1)}], v[{acc(3,m)}:{acc(3,m)+3}]')
        at(gy1+8+m,xm)
    for i in range(3):
        for m in range(5):
            at(G0+5*NT*(i+1)+4+(int(opt.get('pws',2))*m if i<2 else m), lambda p,i=i,m=m: p.ds(f'ds_write_b128 v{PW}, v[{acc(i,m)}:{acc(i,m)+3}] offset:{5120*i+1024*m}'))
    gb=G0+15*NT+4+4+1
    for g,grp in enumerate(groups):
        for o in grp: p.add(o)
        for fn in side.get(g,[]): fn(p)
        if g==gb:
            p.stamp('y2'); p.wvm(S.tyl); p.stamp('y3')
            p.ds(f'ds_write_b128 v{YW}, v[88:91]'); p.ds(f'ds_write_b128 v{YW}, v[92:95] offset:{8*160}')
            p.i('s_mov_b32 exec_lo, -1\ns_mov_b32 exec_hi, 0'); p.ds(f'ds_write_b128 v{YW}, v[96:99] offset:{16*160}'); p.i('s_mov_b64 exec, -1')
            p.wds0(); p.i('s_barrier')
            p.stamp('y4')
            ty=[]
            for t in range(3):
                a=YR+(t==2)
                p.ds(f'ds_read_b64_tr_b16 v[{88+4*t}:{89+4*t}], v{a} offset:{32*160*t}')
                ty.append(p.ds(f'ds_read_b64_tr_b16 v[{90+4*t}:{91+4*t}], v{a} offset:{32*160*t+4*160}'))
            tr=[]
            for i in range(3):
                for m in range(5): tr.append(p.ds(f'ds_read_b128 v[{acc(i,m)}:{acc(i,m)+3}], v{PR+i} offset:{1024*m}'))
    p.stamp('h')
    p.i(f'v_add_u32 v{YW}, s53, v1')
    for m in range(5):
        p.wds(ty[m>>1])
        p.i(f'v_mfma_f32_16x16x32_bf16 v[{acc(3,m)}:{acc(3,m)+3}], v[{I1 if m&1 else I0}:{(I1 if m&1 else I0)+3}], v[{88+4*(m>>1)}:{91+4*(m>>1)}], v[{acc(3,m)}:{acc(3,m)+3}]')
    pk=lambda d,a,b: p.i(f'v_pk_add_f32 v[{d}:{d+1}], v[{a}:{a+1}], v[{b}:{b+1}]')
    p.wds(tr[9])
    for m in range(5):
        for d in (0,2): pk(acc(0,m)+d,acc(0,m)+d,acc(1,m)+d)
    p.wds(tr[14])
    for m in range(5):
        for d in (0,2): pk(acc(0,m)+d,acc(0,m)+d,acc(2,m)+d)
    for m in range(5):
        for d in (0,2): pk(acc(0,m)+d,acc(0,m)+d,acc(3,m)+d)
    for m in range(5):
        a=acc(0,m)
        p.i(f'v_cvt_pk_bf16_f32 v{88+2*m}, v{a}, v{a+1}\nv_cvt_pk_bf16_f32 v{89+2*m}, v{a+2}, v{a+3}')
        p.ds(f'ds_write_b64 v{OW}, v[{88+2*m}:{89+2*m}] offset:{32*m}')
    to=[p.ds(f'ds_read_b128 v[{100+4*t}:{103+4*t}], v{YW} offset:{1024*t}') for t in range(3)]
    for t in range(3):
        p.wds(to[t]); p.vm(f'buffer_store_dwordx4 v[{100+4*t}:{103+4*t}], v{XV+t}, s[48:51], s21 offen '+opt.get('osc','none').replace('none',''))
    l=p.lab('Lep'); p.i(f's_or_b32 s56, s2, s3\ns_cmp_lg_u32 s56, 0\ns_cbranch_scc1 {l}'); p.push()
    p.i(f'''
    v_lshrrev_b32 v8, 4, v0
    v_lshlrev_b32 v8, 13, v8
    v_and_b32 v9, 15, v0
    v_min_u32 v9, 13, v9
    v_lshl_add_u32 v8, v9, 8, v8
    s_mov_b32 s78, {XNF}''')
    def ld():
        for k in range(4):
            p.i(f's_mov_b32 s79, {HF+k*32768}'); p.vm(f'buffer_load_dword v{12+k}, v8, s[44:47], s79 offen sc1')
        return flags1_load(p,16,'s78',32)
    def ck():
        p.i('v_cmp_eq_u32 vcc, s76, v16')
        for k in range(4): p.i(f'v_cmp_eq_u32 s[56:57], s76, v{12+k}\ns_and_b64 vcc, vcc, s[56:57]')
        p.i('s_cmp_eq_u64 vcc, -1')
    p.poll(ld(), ld, ck)
    set_flag(p,'0',8)
    p.pop(); p.label(l)
```

```python
from gen import *
C_G=2*math.sqrt(2/math.pi)*1.4426950408889634
STG=131072
class St: pass
def item(S,e):
    k=int(e[1:]); t=S.tok.setdefault(e,Tok(e))
    isx=e[0]=='x'
    unit=2*(k%5)+(0 if isx else 1)
    lo,hi,add,v,srd=(66,95,128*k,10,36) if isx else (67,69,k*64*3456,14,40)
    def f(p,q):
        if q==0:
            p.i(f's_add_u32 m0, s65, {unit*16384}')
            p.i(f's_cmp_ge_u32 s64, {10-k}\ns_cselect_b32 s83, s{hi}, s{lo}\ns_add_u32 s83, s83, {add}')
        p.vm(f'buffer_load_dwordx4 v{v+q}, s[{srd}:{srd+3}], s83 offen '+(f'offset:{1024*q} ' if q else '')+'lds', t if q==3 else None)
        if q==3: p.stamp('i'+e)
    return [lambda p,q=q: f(p,q) for q in range(4)]
def events(S, seq):
    return [f for e in seq.split() for f in item(S,e)]

def spread(p, main, evs, lo=0.0, hi=1.0):
    n=len(main); k=0
    posn=[int(n*(lo+(hi-lo)*(i+0.5)/len(evs))) for i in range(len(evs))] if evs else []
    masked=False
    for i,o in enumerate(main):
        while k<len(evs) and posn[k]<=i and not masked: evs[k](p); k+=1
        p.add(o)
        if 'exec' in o.text: masked = o.text!='s_mov_b64 exec, -1'
    while k<len(evs): evs[k](p); k+=1

def cmul(q, items):
    for n,(o,x,w) in enumerate(items):
        q.i(f'v_pk_mul_f32 v[{44+2*n}:{45+2*n}], v[{x}:{x+1}], v[{w}:{w+1}] op_sel_hi:[1,0]')
    for n,(o,x,w) in enumerate(items):
        q.i(f'v_pk_fma_f32 v[{o}:{o+1}], v[{x}:{x+1}], v[{w}:{w+1}], v[{44+2*n}:{45+2*n}] op_sel:[1,1,0] op_sel_hi:[0,1,1] neg_lo:[0,1,0]')

def kgen(S,p):
    q=Sub()
    B=[56,104]
    Z1,Z8,Z128,Z256,Z512,Z1024=0,2,4,6,8,10
    G=lambda k: 12+2*k
    p.stamp('f0',q)
    q.wvm(S.tpar)
    p.stamp('f1',q)
    q.i(f'v_lshlrev_b32 v38, 16, v38\nv_mul_f32 v38, {LOG2E:#x}, v38\nv_exp_f32 v38, v38\nv_lshlrev_b32 v39, 16, v39')
    bf16r(q,'v38','v38')
    for n,b in enumerate(B):
        un=(lambda d,s_: q.i(f'v_lshlrev_b32 v{d}, 16, v{s_}')) if n==0 else (lambda d,s_: q.i(f'v_and_b32 v{d}, 0xffff0000, v{s_}'))
        un(b+40,40); un(b+41,41); un(b+42,42); un(b+43,43)
    for b in B: q.i(f'v_mul_f32 v{b+40}, {LOG2E:#x}, v{b+40}\nv_mul_f32 v{b+41}, v{b+41}, v38')
    for b in B: q.i(f'v_exp_f32 v{b+40}, v{b+40}')
    for b in B: q.i(f'v_mul_f32 v{b+41}, {INV2PI:#x}, v{b+41}\nv_mul_f32 v{b+42}, v{b+42}, v38\nv_mul_f32 v{b+43}, v{b+43}, v38')
    for b in B: bf16r(q,f'v{b+40}',f'v{b+40}')
    for b in B: q.i(f'v_mul_f32 v{b+40}, v{b+40}, v38\nv_add_f32 v{b+G(0)}, v{b+42}, v{b+42}\nv_add_f32 v{b+G(0)+1}, v{b+43}, v{b+43}')
    for b in B: q.i(f'v_mul_f32 v{b+40}, {f2u(-1.4426950408889634):#x}, v{b+40}')
    for b in B: q.i(f'v_mul_f32 v{b+42}, 0x43000000, v{b+40}\nv_mul_f32 v{b+43}, 0x43000000, v{b+41}')
    for b in B: q.i(f'v_fract_f32 v{b+41}, v{b+41}\nv_fract_f32 v{b+43}, v{b+43}')
    for b in B: q.i(f'v_exp_f32 v{b+40}, v{b+40}\nv_exp_f32 v{b+42}, v{b+42}\nv_cos_f32 v{b+Z1}, v{b+41}\nv_sin_f32 v{b+Z1+1}, v{b+41}\nv_cos_f32 v{b+Z128}, v{b+43}\nv_sin_f32 v{b+Z128+1}, v{b+43}')
    for b in B:
        q.i(f'v_pk_mul_f32 v[{b+Z1}:{b+Z1+1}], v[{b+Z1}:{b+Z1+1}], v[{b+40}:{b+41}] op_sel_hi:[1,0]')
        q.i(f'v_pk_mul_f32 v[{b+Z128}:{b+Z128+1}], v[{b+Z128}:{b+Z128+1}], v[{b+42}:{b+43}] op_sel_hi:[1,0]')
    cmul(q,[(b+Z8,b+Z1,b+Z1) for b in B]+[(b+Z256,b+Z128,b+Z128) for b in B])
    cmul(q,[(b+Z8,b+Z8,b+Z8) for b in B]+[(b+Z512,b+Z256,b+Z256) for b in B])
    cmul(q,[(b+Z8,b+Z8,b+Z8) for b in B]+[(b+Z1024,b+Z512,b+Z512) for b in B])
    p.stamp('f2',q)
    wr=[0]
    def row(r, off, neg):
        o=152+2*(wr[0]%4); wr[0]+=1
        for n,b in enumerate(B): q.i(f'v_cvt_pk_bf16_f32 v{o+n}, v{b+off}, {"-" if neg else ""}v{b+off+1}')
        return q.ds(f'ds_write_b64 v{228+(r&7)}, v[{o}:{o+1}] offset:{r*512}')
    def frags(base):
        return [q.ds(f'ds_read_b128 v[{base+4*k}:{base+4*k+3}], v{236+(k&3)} offset:{256*(k>>2)}') for k in range(8)]
    E0,E1,Z16=36,38,40
    cmul(q,[(b+Z16,b+Z8,b+Z8) for b in B])
    q.i('v_mov_b32 v160, 0x3f80\nv_mov_b32 v161, 0x3f80'); q.ds('ds_write_b64 v228, v[160:161]')
    row(1,Z8,False); row(2,Z16,False)
    cmul(q,[(b+E1,b+Z8,b+Z16) for b in B]+[(b+E0,b+Z16,b+Z16) for b in B]); row(3,E1,False); row(4,E0,False)
    for j in range(5,15,2):
        cmul(q,[(b+E1,b+E1,b+Z16) for b in B]+[(b+E0,b+E0,b+Z16) for b in B]); row(j,E1,False); row(j+1,E0,False)
    cmul(q,[(b+E1,b+E1,b+Z16) for b in B]); row(15,E1,False)
    EF=164; GF=196
    p.stamp('k1',q)
    te=frags(EF)
    def tile(t):
        tg=frags(GF)
        l=[]
        for k in range(8):
            o=Sub()
            if t==0: o.wds(te[k])
            o.wds(tg[k])
            o.i(f'v_mfma_f32_16x16x32_bf16 v[{26+4*t}:{29+4*t}], v[{GF+4*k}:{GF+4*k+3}], v[{EF+4*k}:{EF+4*k+3}], '+('0' if k==0 else f'v[{26+4*t}:{29+4*t}]'))
            l.append(o.ops)
        return l
    T0,T1=E0,E1
    row(0,G(0),True)
    cmul(q,[(b+T0,b+G(0),b+Z1) for b in B]+[(b+G(4),b+G(0),b+Z128) for b in B]); row(1,T0,True); row(8,G(4),True)
    for k in range(1,4):
        cmul(q,[(b+G(k),b+T0,b+Z1) for b in B]+[(b+T1,b+T0,b+Z128) for b in B]); row(2*k,G(k),True); row(8+2*k-1,T1,True)
        cmul(q,[(b+T0,b+G(k),b+Z1) for b in B]+[(b+G(4+k),b+G(k),b+Z128) for b in B]); row(2*k+1,T0,True); row(8+2*k,G(4+k),True)
    cmul(q,[(b+T1,b+T0,b+Z128) for b in B]); row(15,T1,True)
    p.stamp('k2',q)
    m0=tile(0)
    def mf(l,k):
        for o in l[k]: q.add(o)
    keep={0:G(8),4:G(9),2:G(10),6:G(11)}
    for k in range(0,8,2):
        d0=keep.get(k,T0); d1=T1
        cmul(q,[(b+d0,b+G(k),b+Z256) for b in B]+[(b+d1,b+G(k+1),b+Z256) for b in B]); mf(m0,k); row(k,d0,True); mf(m0,k+1); row(k+1,d1,True)
    src=[(G(0),G(2)),(G(4),G(6)),(G(8),G(10)),(G(9),G(11))]; kp=[G(1),G(3),G(5),G(7)]
    for i in range(4):
        cmul(q,[(b+kp[i],b+src[i][0],b+Z512) for b in B]+[(b+T1,b+src[i][1],b+Z512) for b in B]); row(8+2*i,kp[i],True); row(9+2*i,T1,True)
    p.stamp('k3',q)
    m1=tile(1)
    s3=[G(0),G(4),G(8),G(9),G(1),G(3),G(5),G(7)]
    for i in range(0,8,2):
        d0=G(2) if i==0 else T0
        cmul(q,[(b+d0,b+s3[i],b+Z1024) for b in B]+[(b+T1,b+s3[i+1],b+Z1024) for b in B]); mf(m1,i); row(i,d0,True); mf(m1,i+1); row(i+1,T1,True)
    cmul(q,[(b+T0,b+G(2),b+Z1024) for b in B]); row(8,T0,True)
    m2=tile(2)
    for k in range(8): mf(m2,k)
    return q.ops

def pack(p,S):
    q=p
    q.i(f'''
    v_bfe_u32 v40, v0, 2, 2
    v_bfe_u32 v41, v0, 4, 1
    v_lshl_add_u32 v40, v41, 2, v40
    v_lshlrev_b32 v41, 1, v40
    v_bfe_u32 v42, v0, 1, 1
    v_xor_b32 v41, v41, v42
    s_lshl_b32 s56, s3, 1
    v_xor_b32 v41, s56, v41
    v_lshrrev_b32 v42, 5, v0
    v_lshlrev_b32 v42, 12, v42
    v_lshl_add_u32 v42, v40, 8, v42
    v_and_b32 v43, 1, v0
    v_lshl_add_u32 v42, v43, 3, v42
    v_add_u32 v42, 114688, v42
    v_lshl_add_u32 v44, v41, 4, v42
    v_xor_b32 v41, 8, v41
    v_lshl_add_u32 v45, v41, 4, v42
    s_mul_i32 s58, s62, 5120
    s_add_u32 s58, s58, {W2P}
    s_or_b32 s58, s58, s63''')
    q.wvm(S.tw2); q.i('s_barrier')
    tp={}
    for t in range(10):
        b=64+4*t
        cb=t>>1; o=16384+8192*cb if cb<4 else 0
        q.ds(f'ds_read_b64_tr_b16 v[{b}:{b+1}], v{44+(t&1)} offset:{o}')
        tp[t]=q.ds(f'ds_read_b64_tr_b16 v[{b+2}:{b+3}], v{44+(t&1)} offset:{o+2048}')
        if t>=2: pst(q,t-2,tp)
    pst(q,8,tp); S.tpk=pst(q,9,tp)
def pst(q,t,tp):
    q.i(f'''
    s_add_u32 s56, s3, {4*t}
    s_mul_i32 s57, s56, 52
    s_lshr_b32 s57, s57, 8
    s_mul_i32 s57, s57, {276480-5120}
    s_lshl_b32 s56, s56, 10
    s_add_u32 s56, s56, s57
    s_add_u32 s56, s56, s58''')
    q.wds(tp[t])
    return q.vm(f'buffer_store_dwordx4 v[{64+4*t}:{67+4*t}], v1, s[44:47], s56 offen sc1')

def gelu_ops(q, acc, out, tmp, k):
    for g in range(0,8,4):
        prs=[(acc+2*(g+u), tmp+2*u) for u in range(4)]
        for a,t in prs: q.i(f'v_pk_mul_f32 v[{t}:{t+1}], v[{a}:{a+1}], v[{a}:{a+1}]')
        for a,t in prs: q.i(f'v_pk_fma_f32 v[{t}:{t+1}], v[{t}:{t+1}], v[{k+2}:{k+3}], v[{k}:{k+1}] op_sel_hi:[1,0,0]')
        for a,t in prs: q.i(f'v_pk_mul_f32 v[{t}:{t+1}], v[{t}:{t+1}], v[{a}:{a+1}]')
        for a,t in prs: q.i(f'v_exp_f32 v{t}, v{t}\nv_exp_f32 v{t+1}, v{t+1}',cost=2)
        for a,t in prs: q.i(f'v_pk_fma_f32 v[{t}:{t+1}], v[{t}:{t+1}], v[{k+4}:{k+5}], v[{k+4}:{k+5}] op_sel_hi:[1,0,0]')
        for a,t in prs: q.i(f'v_rcp_f32 v{t}, v{t}\nv_rcp_f32 v{t+1}, v{t+1}',cost=2)
        for a,t in prs: q.i(f'v_pk_mul_f32 v[{t}:{t+1}], v[{t}:{t+1}], v[{a}:{a+1}]')
        for u,(a,t) in enumerate(prs): q.i(f'v_cvt_pk_bf16_f32 v{out+g+u}, v{t}, v{t+1}')
        S_=None
def hstore(q,mt,nt,out,pc,tok=None):
    if getattr(q,'nost',0) and tok is None: return None
    return q.vm(f'buffer_store_dwordx4 v[{out+4*pc}:{out+4*pc+3}], v3, s[44:47], s{84+nt} offen '+(f'offset:{1024*mt+512*pc} ' if mt or pc else '')+'sc1', tok)

def ext_load(p):
    p.vm('buffer_load_dwordx4 v[184:187], v4, s[44:47], s82 offen sc1')
    p.vm('buffer_load_dwordx4 v[188:191], v4, s[44:47], s82 offen offset:512 sc1')
    p.vm('buffer_load_dwordx4 v[176:179], v5, s[44:47], s80 offen sc1')
    return p.vm('buffer_load_dwordx4 v[180:183], v5, s[44:47], s80 offen offset:512 sc1')
def ext_check(p):
    p.i('''
    v_cmp_eq_u32 vcc, s76, v179
    v_cmp_eq_u32 s[56:57], s76, v183
    s_and_b32 vcc_lo, vcc_lo, s56
    s_mov_b32 vcc_hi, -1
    v_cmp_eq_u32 s[56:57], s76, v185
    s_and_b64 vcc, vcc, s[56:57]
    v_cmp_eq_u32 s[56:57], s76, v189
    s_and_b64 vcc, vcc, s[56:57]
    s_cmp_eq_u64 vcc, -1''')

def gpath(p):
    S=St(); S.tok={}; S.dtok={}; S.pend=None
    opt=p.opt
    p.i(f'''
    s_sub_u32 s61, s35, 4
    s_cmp_lt_u32 s61, 20
    s_cselect_b32 s93, 0, 1
    s_cbranch_scc0 L_N0''')
    p.push('kc')
    p.i('''
    s_mul_i32 s86, s34, 20
    s_add_u32 s86, s86, s61
    s_lshl_b32 s56, s86, 2
    s_add_u32 s56, s56, s3
    s_lshl_b32 s57, s56, 8
    v_lshl_add_u32 v24, v0, 2, s57
    s_lshl_b32 s57, s56, 1
    v_mov_b32 v25, s57''')
    p.wds0(); p.stamp('s1')
    p.vm('global_load_dword v40, v24, s[6:7]'); p.vm('global_load_ushort v38, v25, s[14:15]'); p.vm('global_load_dword v41, v24, s[8:9]')
    p.vm('global_load_dword v42, v24, s[10:11]'); p.vm('global_load_dword v43, v24, s[12:13]')
    S.tpar=p.vm('global_load_ushort v39, v25, s[16:17]')
    p.vm('global_load_ushort v25, v25, s[26:27]')
    p.pop(); p.label('L_Gs')
    p.i(f'''
    s_and_b32 s56, s61, 3
    s_lshr_b32 s57, s34, 1
    s_lshl_b32 s57, s57, 2
    s_add_u32 s88, s56, s57
    s_lshr_b32 s56, s61, 2
    s_and_b32 s57, s34, 1
    s_mul_i32 s57, s57, 7
    s_add_u32 s89, s56, s57
    s_lshl_b32 s65, s3, 12
    s_lshl_b32 s56, s88, 2
    s_add_u32 s56, s56, s3
    s_mul_i32 s66, s56, {32*1280}
    s_mul_i32 s67, s3, {16*3456}
    s_lshl_b32 s57, s89, 8
    s_add_u32 s67, s67, s57
    s_lshr_b32 s56, s61, 2
    s_mul_i32 s56, s56, 47
    s_lshr_b32 s56, s56, 5
    s_and_b32 s57, s61, 3
    s_mul_i32 s57, s57, 5
    s_lshr_b32 s57, s57, 1
    s_add_u32 s64, s56, s57
    s_sub_u32 s56, s64, 10
    s_cmp_ge_u32 s64, 10
    s_cselect_b32 s64, s56, s64
    {'s_mov_b32 s64, 0' if opt.get('rot')=='0' else ''}
    s_lshl_b32 s56, s64, 7
    s_add_u32 s66, s66, s56
    s_sub_u32 s95, s66, 1280
    s_mul_i32 s56, s64, {64*3456}
    s_add_u32 s67, s67, s56
    s_sub_u32 s69, s67, {640*3456}
    v_lshrrev_b32 v6, 3, v0
    v_and_b32 v7, 7, v0
    v_lshrrev_b32 v8, 4, v0
    v_xor_b32 v8, v8, v7
    v_mul_u32_u24 v9, 1280, v6
    v_lshl_add_u32 v10, v8, 4, v9
    v_xor_b32 v8, 4, v8
    v_lshl_add_u32 v11, v8, 4, v9
    v_add_u32 v11, {10240-1024}, v11
    v_add_u32 v12, {2*(10240-1024)}, v10
    v_add_u32 v13, {2*(10240-1024)}, v11
    v_lshrrev_b32 v6, 4, v0
    v_and_b32 v7, 15, v0
    v_lshlrev_b32 v8, 2, v6
    v_xor_b32 v8, v8, v7
    v_mul_u32_u24 v9, 3456, v6
    v_lshl_add_u32 v14, v8, 4, v9
    v_add_u32 v15, {4*3456-1024}, v14
    v_add_u32 v16, {2*(4*3456-1024)}, v14
    v_add_u32 v17, {3*(4*3456-1024)}, v14''')
    srd_a(p)
    p.stamp('s2')
    ev=events(S,'x0 w0 x1 w1 x2 w2 x3 w3'); ni=int(opt.get('ninit',10))
    p.i('s_cmp_eq_u32 s93, 0\ns_cbranch_scc0 L_Gi'); p.push('kc')
    for f in ev[:ni]: f(p)
    p.pop(); p.label('L_Gi')
    srd_b(p)
    p.i(f'''
    s_and_b32 s56, s3, 1
    s_lshl_b32 s57, s88, 1
    s_add_u32 s56, s56, s57
    s_lshl_b32 s82, s56, 10
    s_add_u32 s82, s82, {STAT}
    s_mul_i32 s84, s56, {4*55296}
    s_lshl_b32 s97, s56, 12
    s_lshr_b32 s56, s3, 1
    s_lshl_b32 s57, s89, 1
    s_add_u32 s56, s56, s57
    s_lshl_b32 s57, s56, 7
    s_add_u32 s97, s97, s57
    s_add_u32 s97, s97, {HF}
    s_lshl_b32 s57, s56, 11
    s_add_u32 s84, s84, s57
    s_add_u32 s84, s84, {HP}
    s_add_u32 s85, s84, {2*55296}
    s_cmp_eq_u32 s56, 27
    s_cselect_b32 s84, {OOB:#x}, s84
    s_cselect_b32 s85, {OOB:#x}, s85
    s_cselect_b32 s56, 26, s56
    s_lshl_b32 s80, s56, 10
    s_add_u32 s80, s80, {AEXT}''')
    tile2(p,'G'); w2p_setup(p)
    p.i(f'''
    v_and_b32 v6, 31, v0
    v_lshrrev_b32 v7, 5, v0
    v_lshlrev_b32 v4, 4, v6
    v_lshl_add_u32 v5, v7, 31, v4
    v_bfe_u32 v8, v0, 1, 3
    v_xor_b32 v8, v8, v7
    s_and_b32 s56, s3, 1
    s_lshl_b32 s56, s56, 13
    v_lshl_add_u32 v9, v6, 7, s56''')
    for i in range(4):
        p.i(f'v_xor_b32 v6, {2*i}, v8\nv_lshl_add_u32 v{240+3*i}, v6, 4, v9\nv_add_u32 v{241+3*i}, 0x10000, v{240+3*i}\nv_add_u32 v{242+3*i}, 0x20000, v{240+3*i}')
    p.i(f'''
    v_bfe_u32 v6, v0, 2, 2
    v_lshl_add_u32 v8, v7, 3, v6
    v_lshlrev_b32 v8, 8, v8
    v_bfe_u32 v9, v0, 4, 1
    v_lshl_add_u32 v8, v9, 5, v8
    v_mul_u32_u24 v3, 55296, v9
    v_lshl_add_u32 v3, v7, 8, v3
    v_and_b32 v9, 3, v0
    v_lshl_add_u32 v8, v9, 3, v8
    s_and_b32 s56, s3, 2
    v_xor_b32 v6, s56, v6
    v_lshl_add_u32 v18, v6, 6, v8
    v_xor_b32 v21, 64, v18
    v_add_u32 v19, 0x10000, v18
    v_add_u32 v20, 0x20000, v18
    v_add_u32 v22, 0x10000, v21
    v_add_u32 v23, 0x20000, v21
    v_and_b32 v6, 15, v0
    v_lshl_add_u32 v3, v6, 4, v3''')
    if opt.get('arr'):
        p.wvm(S.tpar); p.stamp('ap'); p.wvm(S.tok['x0']); p.stamp('ax'); p.wvm(S.tok['w0']); p.stamp('aw')
    p.i(f'''
    s_cmp_eq_u32 s93, 0
    s_cbranch_scc0 L_Npack''')
    p.push('kc')
    p.i(f'''
    s_lshl_b32 s56, s3, 13
    s_add_u32 s56, s56, {STG}
    v_lshrrev_b32 v6, 1, v0
    v_and_b32 v7, 1, v0
    v_lshl_add_u32 v7, v7, 3, s56''')
    for f in range(8): p.i(f'v_xor_b32 v8, {2*f}, v6\nv_lshl_add_u32 v{228+f}, v8, 4, v7')
    p.i(f'''
    v_and_b32 v6, 7, v0
    v_lshlrev_b32 v6, 1, v6
    v_lshrrev_b32 v7, 4, v0
    v_xor_b32 v6, v6, v7
    v_and_b32 v7, 15, v0
    v_lshl_add_u32 v7, v7, 9, s56''')
    for k in range(4): p.i(f'v_xor_b32 v8, {4*k}, v6\nv_lshl_add_u32 v{236+k}, v8, 4, v7')
    kg=kgen(S,p)
    if opt.get('nokg'): kg=[o for o in kg if 'memtime' in o.text or o.kind=='wvm']
    nk=int(opt.get('nk',24)); S.nk=nk
    spread(p,kg,ev[ni:nk],float(opt.get('klo',0.5)),float(opt.get('khi',1.0)))
    nonce(p)
    p.stamp('k4')
    p.i('s_branch L_Gm'); p.pop()
    p.label('L_N0'); p.push()
    p.i(f'''
    s_lshl_b32 s62, s34, 3
    s_add_u32 s62, s62, s61
    s_sub_u32 s62, s62, 20
    s_lshl_b32 s86, s62, 7
    s_add_u32 s86, s86, {W2F}
    s_cmp_lt_u32 s62, 54
    s_cselect_b32 s63, 0, {OOB:#x}
    s_lshl_b32 s56, s62, 2
    s_add_u32 s56, s56, s3
    s_mul_i32 s56, s56, {8*1280}
    s_or_b32 s78, s56, s63
    v_lshrrev_b32 v6, 4, v0
    v_and_b32 v7, 15, v0
    v_lshlrev_b32 v8, 1, v6
    v_xor_b32 v7, v7, v8
    v_mul_u32_u24 v6, 1280, v6
    v_lshl_add_u32 v46, v7, 4, v6
    v_xor_b32 v7, 8, v7
    v_lshl_add_u32 v47, v7, 4, v6
    v_add_u32 v47, {4*1280-1024}, v47
    s_lshl_b32 s79, s3, 11''')
    p.wds0(); p.stamp('s1'); srd(p,52,24,1728*1280)
    for cb in range(5):
        p.i(f's_add_u32 m0, s79, {STG+8192*cb if cb<4 else 114688}\ns_add_u32 s57, s78, {cb*256}')
        p.vm('buffer_load_dwordx4 v46, s[52:55], s57 offen lds')
        S.tw2=p.vm('buffer_load_dwordx4 v47, s[52:55], s57 offen offset:1024 lds')
    p.i('s_branch L_Gs'); p.pop()
    p.label('L_Npack'); p.push()
    ev=events(S,'x0 w0 x1 w1 x2 w2 x3 w3')
    npk=int(opt.get('npk',8))
    for e in ev[:npk]: e(p)
    pack(p,S)
    for e in ev[npk:nk]: e(p)
    nonce(p)
    p.stamp('k4')
    p.pop(); p.label('L_Gm')
    p.stamp('a')
    if opt.get('stop')=='K':
        p.i(f's_lshl_b32 s56, s86, 2\ns_add_u32 s56, s56, s3\ns_lshl_b32 s56, s56, 12\ns_add_u32 s56, s56, {YB}\ns_cmp_eq_u32 s93, 0\ns_cselect_b32 s56, s56, {OOB:#x}')
        for t in range(3): p.vm(f'buffer_store_dwordx4 v[{26+4*t}:{29+4*t}], v1, s[44:47], s56 offen offset:{1024*t}')
        p.wvm0(); p.i('s_branch L_fin'); p.label('L_noconv'); return
    gemm1(p,S)
    if opt.get('stop')=='H':
        p.wvm0(); p.i('s_branch L_fin'); p.label('L_noconv'); return
    import gen_c
    gen_c.conv(p,S); gen_c.gemm2(p,S)

def gemm1(p,S):
    opt=p.opt
    ACC=lambda mt,nt: 64+32*mt+16*nt
    FA=lambda n,mt: 128+16*(n%3)+4*mt
    FB=lambda n,nt: 136+16*(n%3)+4*nt
    ft={}
    def rd(q,n,part):
        j,i=divmod(n,4)
        if part<2:
            mt=part; win,o=divmod((2*(j%5)+1)*16384,65536); b=FA(n,mt)
            q.ds(f'ds_read_b64_tr_b16 v[{b}:{b+1}], v{18+3*mt+win} offset:{o+4096*i}')
            q.ds(f'ds_read_b64_tr_b16 v[{b+2}:{b+3}], v{18+3*mt+win} offset:{o+4096*i+1024}')
        else:
            nt=part-2; win,o=divmod(2*(j%5)*16384,65536); b=FB(n,nt)
            ft[n]=q.ds(f'ds_read_b128 v[{b}:{b+3}], v{240+3*i+win} offset:{o+4096*nt}')
    pre={}
    def sync(q,j):
        q.wvm(S.tok.setdefault(f'w{j}',Tok(f'w{j}')))
        for fn in pre.get(j,[]): fn(q)
        q.i('s_barrier')
    side={}
    def at(g,fn): side.setdefault(g,[]).append(fn)
    step=float(opt.get('dstep',2.4)); g=0.0
    assert S.nk%4==0 and S.nk<=28
    for f in events(S,'x0 w0 x1 w1 x2 w2 x3 w3')[S.nk:]: at(int(g),f); g+=float(opt.get('dstep0',2.0))
    for j,b in ((4,0),(5,2),(6,3),(7,4),(8,5),(9,6)):
        g=max(g,16*b-8)
        for f in events(S,f'x{j} w{j}'): at(int(g),f); g+=step
        assert g-step<16*j-8, (j,g)
    gend=g
    def pk0(q):
        l=p.lab('Lpk'); q.i(f's_cmp_eq_u32 s93, 0\ns_cbranch_scc1 {l}'); q.push(); q.wvm(S.tpk); q.pop(); q.label(l)
    def pk1(q):
        l=p.lab('Lpk'); q.i(f's_lshl_b32 s78, s3, 1\ns_add_u32 s78, s78, s93\ns_cmp_eq_u32 s78, 1\ns_cbranch_scc0 {l}'); q.push(); set_flag(q,'s86',224); q.pop(); q.label(l)
    jb=int(opt.get('jpk',1))
    pre[jb]=[pk0]; at(max(0,16*jb-8),pk1)
    def f0(p):
        w2f_base(p); S.tf=w2f_load(p,224)
    NW1=int(opt.get('nw1',0))
    at(10+int(opt.get('gf0',78)) if NW1 else 140,f0)
    gw=int(opt.get('gw',104))
    k=0; g=max(gw+2,gend); ws=float(opt.get('wstep',2.4))
    while g<158 and k<NW1:
        at(int(g),lambda p,k=k: w2p_load(p,k)); k+=1; g+=ws
    S.w2next=k
    def e0(p): S.te0=ext_load(p)
    ge=int(opt.get('gext',148))
    at(ge-int(opt.get('gel',20)),e0)
    def c0(p):
        p.stamp('x0')
        p.poll(S.te0, lambda: ext_load(p), lambda: ext_check(p), int(opt.get('sle',8)))
        p.stamp('x1')
        p.i('v_mov_b32 v179, 0\nv_mov_b32 v183, 0')
        for nt in (0,1):
            b=184+4*nt; k=192+6*nt
            p.i(f'''
            v_mul_f32 v{k}, {f2u(-C_G):#x}, v{b+3}
            v_mul_f32 v{k+2}, v{b+3}, v{b+3}
            v_lshlrev_b32 v{k+4}, 16, v{b+2}
            v_and_b32 v{k+5}, 0xffff0000, v{b+2}
            v_mul_f32 v{k+2}, v{k+2}, v{k}
            v_add_f32 v{k+4}, v{k+4}, v{k+5}
            v_mul_f32 v{k+2}, {f2u(0.044715):#x}, v{k+2}
            v_mov_b32 v{b+3}, 0
            v_mov_b32 v{b+1}, v{b}''')
    at(ge,c0)
    for m in range(4):
        mt,nt=m>>1,m&1
        at(ge+3+m,lambda p,mt=mt,nt=nt: p.i(f'v_mfma_f32_32x32x16_bf16 v[{ACC(mt,nt)}:{ACC(mt,nt)+15}], v[{176+4*mt}:{179+4*mt}], v[{184+4*nt}:{187+4*nt}], v[{ACC(mt,nt)}:{ACC(mt,nt)+15}]'))
    import gen_c
    x=Sub(); gen_c.conv_addr(x); gen_c.setup2(x); Q1=list(x.ops)
    x=Sub(); gen_c.expand(x)
    Q2=[]; masked=False
    for o in x.ops:
        if masked: Q2[-1].append(o)
        else: Q2.append([o])
        if 'exec' in o.text: masked = o.text!='s_mov_b64 exec, -1'
    q1g=int(opt.get('q1g',16)); q2g=max(int(gend)+1,int(opt.get('q2g',121))); q1r=float(opt.get('q1r',1.9)); q2r=float(opt.get('q2r',2.6)); cr=[0.0]
    def shadow(g):
        if q1g<=g<q2g:
            cr[0]+=q1r
            while Q1 and (cr[0]>=1 or g==q2g-1): p.add(Q1.pop(0)); cr[0]-=1
            if g==q2g-1: cr[0]=0
        elif g>=q2g:
            cr[0]+=q2r
            while Q2 and (cr[0]>=1 or g==159):
                c=Q2.pop(0); p.extend(c); cr[0]-=sum(o.kind in('i','ds') for o in c)
    sync(p,0)
    p.stamp('b0')
    for n in (0,1):
        for part in range(4): rd(p,n,part)
    for n in range(40):
        for m in range(4):
            g=4*n+m; mt,nt=m>>1,(m&1)^(m>>1)
            if m==0: p.wds(ft[n])
            a=ACC(mt,nt)
            p.i(f'v_mfma_f32_32x32x16_bf16 v[{a}:{a+15}], v[{FA(n,mt)}:{FA(n,mt)+3}], v[{FB(n,nt)}:{FB(n,nt)+3}], '+('0' if n==0 else f'v[{a}:{a+15}]'))
            if n+2<40:
                if m==0 and (n+2)%4==0:
                    j=(n+2)//4
                    if g==gw and NW1:
                        p.wvm(S.tok[f'w{j}']); w2f_poll(p,224,S.tf)
                    else: sync(p,j)
                rd(p,n+2,m)
            for fn in side.get(g,[]): fn(p)
            shadow(g)
            if g==79: p.stamp('b')
            if g%16==15: p.stamp(f'j{g//16}')
    p.stamp('c')
    if NW1: p.i('s_barrier')
    else: w2f_poll(p,224,S.tf)
    S.th=Tok('h')
    def gelu_all():
        q=Sub(); q.nost=opt.get('nost')
        for m in range(4):
            mt,nt=m>>1,m&1; o=128+8*m
            gelu_ops(q,ACC(mt,nt),o,160,192+6*nt)
            hstore(q,mt,nt,o,0); hstore(q,mt,nt,o,1,S.th if m==3 else None)
        return q
    p.i('s_cmp_eq_u32 s93, 0\ns_cbranch_scc1 L_gc'); p.push('nc')
    p.extend(gelu_all().ops)
    p.stamp('d')
    p.i('s_branch L_skipconv' if opt.get('stop')!='H' else 's_branch L_gd'); p.pop(); p.label('L_gc'); p.push('cv')
    p.i(f's_mov_b32 s79, {XNF}\ns_lshl_b32 s81, s86, 14\ns_lshl_b32 s56, s3, 12\ns_add_u32 s81, s81, s56\ns_add_u32 s81, s81, {XNT}')
    S.tu=Tok('u')
    def xl(p): S.tx=w0_load(p,224,'s79',32)
    def xp(p):
        p.stamp('c0'); w0_poll(p,224,'s79',32,S.tx); p.stamp('c1')
        for m in range(4): p.vm(f'buffer_load_dwordx4 a[{240+4*m}:{243+4*m}], v1, s[44:47], s81 offen '+(f'offset:{1024*m} ' if m else '')+'sc1', S.tu if m==3 else None)
    ops=gelu_all().ops; n=len(ops)
    i0,i1=int(n*float(opt.get('xf0',0.2))),int(n*float(opt.get('xf1',0.55)))
    p.extend(ops[:i0]); xl(p); p.extend(ops[i0:i1]); xp(p); p.extend(ops[i1:])
    gen_c.ustage(p,p,S)
    p.stamp('d')
    p.pop()
    if opt.get('stop')=='H':
        p.label('L_gd'); p.wvm0(); set_flag(p,'s97',6)
```

```python
import sys, struct, math
from asmgen import *

NAME='parallel_sum__ssm_conv_s4d__mixer_channel_mlp__prompt_kernel'
EPO=0; XNF=4096; W2F=8192; STAT=32768; AEXT=65536; XNT=0x20000; YB=0x2A0000; W2P=0x520000; HP=0x740000; HF=0xE00000; YF=0xE20000; WSZ=0xE40000
STAMP=0xE40000
OOB=0x80000000
TAG=0x3F803F80
def f2u(x): return struct.unpack('<I',struct.pack('<f',x))[0]
LOG2E=f2u(1.4426950408889634); INV2PI=f2u(1/(2*math.pi)); EPS=f2u(1e-5)
SPIN=20000
SP=[70,72,74,18,4,6,8,10,12,14,16,32,22,26,62,30,66]

class G(Prog):
    def __init__(s, opt):
        super().__init__(); s.opt=opt; s.nl=0; s.w2t={}; s.K1=int(opt.get('K1',56))
    def lab(s,p='L'):
        s.nl+=1; return f'{p}_{s.nl}'
    def stamp(s, name, q=None):
        st=s.opt.get('stamps')
        if not st: return
        l=str(st).split(',')
        if name not in l: return
        r=SP[l.index(name)]
        (q or s).i(f's_memtime s[{r}:{r+1}]')
    def poll(s, tok, reload_fn, check_fn, sleep=2):
        ok=s.lab('Lok'); lp=s.lab('Lsp')
        s.wvm(tok); check_fn(); s.i(f's_cbranch_scc1 {ok}')
        s.push()
        s.i(f's_mov_b32 s96, 0'); s.label(lp)
        s.i(f's_sleep {sleep}'); reload_fn(); s.wvm0(); check_fn()
        s.i(f's_cbranch_scc1 {ok}')
        s.i(f's_add_u32 s96, s96, 1\ns_cmp_lt_u32 s96, {SPIN}\ns_cbranch_scc1 {lp}')
        s.pop(); s.label(ok)

def bf16r(p, dst, src):
    p.i(f'v_cvt_pk_bf16_f32 {dst}, {src}, {src}\nv_and_b32 {dst}, 0xffff0000, {dst}')

def xreduce(p, regs_, tmp, steps):
    for st in steps:
        for k,r in enumerate(regs_):
            t=tmp[k%len(tmp)]
            if st==8: p.i(f'v_add_f32_dpp v{r}, v{r}, v{r} row_ror:8 row_mask:0xf bank_mask:0xf')
            else:
                p.i(f'v_mov_b32 v{t}, v{r}'); p.i(f'v_permlane{st}_swap_b32 v{r}, v{t}'); p.i(f'v_add_f32 v{r}, v{r}, v{t}')

def prologue(p):
    p.i(f'''
    s_load_dwordx16 s[4:19], s[0:1], 0
    s_load_dwordx8 s[20:27], s[0:1], 64
    s_load_dwordx4 s[28:31], s[0:1], 96
    s_load_dwordx2 s[32:33], s[0:1], 112
    s_cmp_lt_u32 s2, 256
    s_cbranch_scc1 L_go
    s_endpgm''')
    p.label('L_go')
    if p.opt.get('stamps') or p.opt.get('dbgt'): p.i('s_memrealtime s[94:95]\ns_memtime s[68:69]')
    p.i(f'''
    v_lshrrev_b32 v1, 6, v0
    v_and_b32 v0, 63, v0
    s_lshr_b32 s35, s2, 3
    v_readfirstlane_b32 s3, v1
    s_and_b32 s34, s2, 7
    v_lshlrev_b32 v1, 4, v0
    ''')
    codepf(p)
    p.i('s_cmp_lt_u32 s35, 4\ns_cbranch_scc1 L_F')

def codepf(p):
    l=p.lab('Lpf'); h=p.lab('Lpc')
    p.i(f's_cmp_lg_u32 s3, {9 if p.opt.get("nopf") else 3}\ns_cbranch_scc1 {l}'); p.push()
    p.i('s_getpc_b64 s[56:57]'); p.label(h)
    p.i(f'''
    s_sub_u32 s56, s56, {h}-L_go
    s_subb_u32 s57, s57, 0
    s_and_b32 s58, s35, 7
    s_mul_i32 s58, s58, 44
    v_min_u32 v2, 43, v0
    v_add_u32 v2, s58, v2
    v_lshlrev_b32 v2, 7, v2
    v_min_u32 v2, L_codeend-L_go-128, v2
    v_mov_b32 v3, s57
    v_add_co_u32 v2, vcc, s56, v2
    v_addc_co_u32 v3, vcc, 0, v3, vcc''')
    p.vm('global_load_dword v255, v[2:3], off')
    p.pop(); p.label(l)

def srd(p, n, lo, size):
    p.i(f's_mov_b32 s{n}, s{lo}\ns_mov_b32 s{n+1}, s{lo+1}\ns_mov_b32 s{n+2}, {size}\ns_mov_b32 s{n+3}, 0x20000')
def srd_a(p):
    srd(p,36,4,2048*1280); srd(p,40,20,640*3456)
def srd_b(p):
    srd(p,44,32,WSZ+(0x100000 if p.opt.get('stamps') else 0)); srd(p,48,28,2048*1280)
    p.i('v_mov_b32 v254, 0'); p.tepo=p.vm('buffer_load_dword v254, v254, s[44:47], 0 offen sc1')

def tile2(p, role):
    if p.opt.get('part','2d')=='tok':
        p.i('''
        s_and_b32 s87, s35, 3
        s_lshl_b32 s58, s34, 2
        s_add_u32 s59, s87, s58
        s_lshr_b32 s58, s35, 2
        s_add_u32 s56, s87, s58
        s_add_u32 s60, s56, 1
        s_and_b32 s60, s60, 3''')
        if role!='F':
            p.i('''
            s_add_u32 s56, s56, 2
            s_and_b32 s56, s56, 3
            s_add_u32 s56, s56, 4
            s_cmp_lt_u32 s58, 3
            s_cselect_b32 s60, s60, s56
            s_sub_u32 s57, s35, 24
            s_cmp_ge_u32 s35, 24
            s_cselect_b32 s60, s57, s60''')
        return
    if role=='F': p.i('s_lshl_b32 s59, s35, 1\ns_mov_b32 s60, s35')
    else:
        p.i('''
        s_sub_u32 s56, s35, 4
        s_mul_i32 s57, s56, 52
        s_lshr_b32 s57, s57, 8
        s_mul_i32 s58, s57, 5
        s_sub_u32 s56, s56, s58
        s_lshl_b32 s59, s57, 1
        s_add_u32 s60, s57, s56
        s_cmp_lt_u32 s56, 2
        s_cselect_b32 s58, 2, 0
        s_cselect_b32 s56, 0, 1
        s_add_u32 s60, s60, s58
        s_add_u32 s59, s59, s56
        s_sub_u32 s56, s35, 24
        s_lshr_b32 s57, s56, 1
        s_add_u32 s57, s57, 1
        s_cmp_ge_u32 s35, 24
        s_cselect_b32 s59, s56, s59
        s_cselect_b32 s60, s57, s60
        s_and_b32 s60, s60, 3''')
    p.i('''
    s_lshr_b32 s56, s34, 1
    s_lshl_b32 s56, s56, 3
    s_add_u32 s59, s59, s56
    s_and_b32 s56, s34, 1
    s_lshl_b32 s56, s56, 2
    s_add_u32 s60, s60, s56''')

def touch(p, v, soff, dst):
    return p.vm(f'buffer_load_dword v{dst}, v{v}, s[44:47], {soff} offen sc1')

def nonce(p):
    p.wvm(p.tepo)
    p.i('v_readfirstlane_b32 s76, v254\ns_mul_i32 s76, s76, 0x19660d\ns_add_u32 s76, s76, 0x3c6ef35f')
def check_all(p, v, n):
    p.i(f'v_cmp_eq_u32 vcc, s76, v{v}')
    if n<64:
        m=((1<<64)-1)^((1<<n)-1)
        if m&0xffffffff: p.i(f's_or_b32 vcc_lo, vcc_lo, {m&0xffffffff:#x}')
        p.i(f's_or_b32 vcc_hi, vcc_hi, {m>>32:#x}')
    p.i('s_cmp_eq_u64 vcc, -1')
def flags1_load(p, v, soff, n=64):
    p.i(f'v_min_u32 v{v}, {n-1}, v0\nv_lshlrev_b32 v{v}, 7, v{v}'); return p.vm(f'buffer_load_dword v{v}, v{v}, s[44:47], {soff} offen sc1')
def set_flag(p, soff, v):
    p.i(f'v_mov_b32 v{v}, s76\nv_mov_b32 v{v+1}, 0\ns_mov_b64 exec, 1')
    p.vm(f'buffer_store_dword v{v}, v{v+1}, s[44:47], {soff} offen sc1')
    p.i('s_mov_b64 exec, -1')
class W0:
    def __init__(s,p): s.p=p
    def __enter__(s):
        s.l=s.p.lab('Lw0'); s.p.i(f's_cmp_lg_u32 s3, 0\ns_cbranch_scc1 {s.l}'); s.p.push()
    def __exit__(s,*a): s.p.pop(); s.p.label(s.l)
def w2f_base(p): p.i(f's_mul_i32 s79, s3, {16*128}\ns_add_u32 s79, s79, {W2F}')
def w2f_load(p, v): return flags1_load(p,v,'s79',16)
def w2f_poll(p, v, tok=None, sleep=None):
    sleep=sleep or int(p.opt.get('slw',8))
    if tok is None: tok=w2f_load(p,v)
    p.poll(tok, lambda: w2f_load(p,v), lambda: check_all(p,v,64), sleep)
    p.i('s_barrier')
def w0_load(p, v, soff, n):
    with W0(p): t=flags1_load(p,v,soff,n)
    return t
def w0_poll(p, v, soff, n, tok=None, sleep=2):
    with W0(p):
        if tok is None: tok=flags1_load(p,v,soff,n)
        p.poll(tok, lambda: flags1_load(p,v,soff,n), lambda: check_all(p,v,64), sleep)
    p.i('s_barrier')

def fentry(p):
    p.label('L_F')
    save=p.reg; p.reg=('F',)
    if p.opt.get('noF'): p.i('s_endpgm')
    p.i(f'''
    s_lshl_b32 s61, s34, 2
    s_add_u32 s61, s61, s35
    s_and_b32 s56, s34, 1
    s_lshr_b32 s57, s34, 1
    s_lshl_b32 s57, s57, 2
    s_add_u32 s57, s57, s35
    s_mul_i32 s62, s56, 14
    s_add_u32 s62, s62, s57
    s_sub_u32 s56, 14, s56
    s_cmp_lt_u32 s57, s56
    s_cselect_b32 s62, s62, 0
    s_cselect_b32 s63, 0, {OOB:#x}''')
    p.i(f'''
    s_and_b32 s64, s3, 1
    s_lshl_b32 s64, s64, 2
    v_lshrrev_b32 v2, 4, v0
    v_and_b32 v3, 15, v0
    v_xor_b32 v8, v3, v2
    v_xor_b32 v8, s64, v8
    v_mul_u32_u24 v9, 1280, v2''')
    for rg in range(4):
        p.i(f'v_xor_b32 v14, {4*rg}, v8\nv_lshl_add_u32 v14, v14, 4, v9\nv_add_u32 v{10+rg}, {4*rg*1280}, v14')
    p.i(f'''
    s_lshl_b32 s56, s61, 2
    s_add_u32 s56, s56, s3
    s_mul_i32 s56, s56, {16*1280}
    s_mul_i32 s65, s3, 20480''')
    tx={}
    p.wds0(); p.stamp('s1'); srd_a(p)
    for cb in range(5):
        for rg in range(4):
            p.i(f's_add_u32 m0, s65, {cb*4096+rg*1024}')
            if rg==0: p.i(f's_add_u32 s57, s56, {cb*256}')
            tx[cb,rg]=p.vm(f'buffer_load_dwordx4 v{10+rg}, s[36:39], s57 offen lds')
    p.i('s_branch L_F2'); p.reg=save
    p.ftx=tx

def fpath(p):
    if not hasattr(p,'ftx'): fentry(p)
    tx=p.ftx
    p.label('L_F2'); p.push('F')
    srd_b(p)
    p.i(f'''
    v_lshrrev_b32 v14, 3, v0
    v_and_b32 v15, 7, v0
    v_mul_u32_u24 v14, 3456, v14
    v_lshl_add_u32 v61, v15, 4, v14
    s_mul_i32 s56, s3, {160*3456}
    s_lshl_b32 s57, s62, 7
    s_add_u32 s56, s56, s57
    s_or_b32 s80, s56, s63''')
    tw=[]
    def w1ld():
        m=len(tw)
        if m<20:
            p.i(f's_add_u32 s57, s80, {m*8*3456}')
            tw.append(p.vm(f'buffer_load_dwordx4 v[{64+4*m}:{67+4*m}], v61, s[40:43], s57 offen'))
    p.i(f's_lshl_b32 s56, s62, 7\nv_lshl_add_u32 v15, v0, 1, s56')
    tb1=p.vm('global_load_ushort v15, v15, s[22:23]')
    p.stamp('f0')
    p.i(f'''
    v_xor_b32 v8, s64, v3
    v_xor_b32 v8, v8, v2
    v_lshlrev_b32 v9, 8, v3
    v_add_u32 v9, s65, v9''')
    for k in range(4):
        p.i(f'v_xor_b32 v14, {4*k}, v8\nv_lshl_add_u32 v{16+k}, v14, 4, v9')
    p.i(f's_mov_b32 s66, {TAG:#x}')
    for k in range(8): p.i(f'v_mov_b32 v{20+k}, 0')
    rd={}
    def rdx(cb):
        p.wvm(tx[cb,3])
        for k in range(4): rd[cb,k]=p.ds(f'ds_read_b128 v[{160+16*(cb%2)+4*k}:{163+16*(cb%2)+4*k}], v{16+k} offset:{cb*4096}')
    rdx(0)
    p.stamp('f1')
    for cb in range(5):
        if cb<4: rdx(cb+1)
        for k in range(4):
            p.wds(rd[cb,k])
            for e in range(4):
                r=160+16*(cb%2)+4*k+e
                p.i(f'v_dot2_f32_bf16 v{20+e}, v{r}, s66, v{20+e}\nv_dot2_f32_bf16 v{24+e}, v{r}, v{r}, v{24+e}')
            if cb>=int(p.opt.get('fw',1)) and (k%2==1 or cb>=2): w1ld()
    p.i('''
    v_add_f32 v20, v20, v21
    v_add_f32 v22, v22, v23
    v_add_f32 v24, v24, v25
    v_add_f32 v26, v26, v27
    v_add_f32 v20, v20, v22
    v_add_f32 v21, v24, v26''')
    p.stamp('f2')
    xreduce(p,[20,21],[22,23],[16,32])
    p.i(f'''
    v_mul_f32 v20, {f2u(1/640):#x}, v20
    v_mul_f32 v21, {f2u(1/640):#x}, v21
    v_fma_f32 v21, -v20, v20, v21
    v_max_f32 v21, 0, v21''')
    w1ld()
    bf16r(p,'v22','v20')
    bf16r(p,'v23','v21')
    p.i(f'v_add_f32 v23, {EPS:#x}, v23'); bf16r(p,'v23','v23')
    w1ld()
    p.i('v_sqrt_f32 v23, v23'); bf16r(p,'v23','v23')
    p.i('''
    v_rcp_f32 v24, v23
    v_sub_f32 v25, v20, v22
    v_mul_f32 v25, v25, v24
    v_mul_f32 v26, v21, v24
    v_mul_f32 v26, v26, v24
    v_mul_f32 v27, v22, v24
    v_sub_f32 v27, 0, v27''')
    w1ld()
    bf16r(p,'v25','v25'); bf16r(p,'v26','v26')
    p.i(f'v_add_f32 v26, {EPS:#x}, v26'); bf16r(p,'v26','v26')
    p.i('v_sqrt_f32 v26, v26'); bf16r(p,'v26','v26')
    p.i('''
    v_mul_f32 v26, v26, v23
    v_fma_f32 v25, v25, v23, v22
    v_rcp_f32 v31, v26''')
    bf16r(p,'v22','v25'); nonce(p); p.i('v_sub_f32 v25, v25, v22\nv_cvt_pk_bf16_f32 v28, -v22, -v25\nv_mov_b32 v29, s76')
    bf16r(p,'v22','v26'); p.i('v_sub_f32 v26, v26, v22\nv_cvt_pk_bf16_f32 v30, v22, v26')
    while len(tw)<int(p.opt.get('fw2',0)): w1ld()
    T1=81920; T2=81920+1024
    p.i(f'''
    s_lshl_b32 s56, s61, 2
    s_add_u32 s56, s56, s3
    s_lshl_b32 s56, s56, 8
    s_add_u32 s56, s56, {STAT}
    s_lshl_b32 s57, s3, 6
    v_lshl_add_u32 v22, v0, 2, s57
    s_mov_b64 exec, 0xffff''')
    p.vm('buffer_store_dwordx4 v[28:31], v1, s[44:47], s56 offen sc1')
    p.i(f'v_add_u32 v22, {T1}, v22')
    p.ds('ds_write_b32 v22, v24'); p.ds('ds_write_b32 v22, v27 offset:256')
    p.i('s_mov_b64 exec, -1')
    p.stamp('a')
    p.wds0(); p.i('s_barrier')
    p.i(f'''
    v_bfe_u32 v23, v0, 2, 3
    v_lshlrev_b32 v23, 5, v23
    v_add_u32 v23, {T1}, v23''')
    for k in range(2): p.ds(f'ds_read_b128 v[{44+4*k}:{47+4*k}], v23 offset:{16*k}')
    for k in range(2): tl=p.ds(f'ds_read_b128 v[{52+4*k}:{55+4*k}], v23 offset:{256+16*k}')
    def colsum():
        p.stamp('c')
        p.i('s_mov_b32 s66, 0x3f80\ns_mov_b32 s67, 0x3f800000')
        for m in range(20):
            if m%4==0: p.wvm(tw[m+3])
            for e in range(4):
                r=64+4*m+e
                c0='0' if m==0 else f'v{32+2*e}'; c1='0' if m==0 else f'v{33+2*e}'
                p.i(f'v_dot2_f32_bf16 v{32+2*e}, v{r}, s66, {c0}\nv_dot2_f32_bf16 v{33+2*e}, v{r}, s67, {c1}')
        for st in (8,16,32):
            if st==8:
                for r in range(32,40): p.i(f'v_add_f32_dpp v{r}, v{r}, v{r} row_ror:8 row_mask:0xf bank_mask:0xf')
            else:
                for r in range(32,40): p.i(f'v_mov_b32 v{r+32}, v{r}')
                for r in range(32,40): p.i(f'v_permlane{st}_swap_b32 v{r}, v{r+32}')
                for r in range(32,40,2): p.i(f'v_pk_add_f32 v[{r}:{r+1}], v[{r}:{r+1}], v[{r+32}:{r+33}]')
        p.i(f'''
        s_lshl_b32 s57, s3, 8
        s_add_u32 s57, s57, {T2}
        v_lshl_add_u32 v22, v0, 5, s57
        s_mov_b64 exec, 0xff''')
        p.ds('ds_write_b128 v22, v[32:35]'); p.ds('ds_write_b128 v22, v[36:39] offset:16')
        p.i('s_mov_b64 exec, -1'); p.wds0(); p.i('s_barrier')
        with W0(p):
            p.i(f'v_lshlrev_b32 v22, 2, v0\nv_add_u32 v22, {T2}, v22')
            tt=[p.ds(f'ds_read_b32 v{32+k}, v22 offset:{256*k}') for k in range(4)]
            p.wds(tt[3])
            p.i('v_add_f32 v32, v32, v33\nv_add_f32 v34, v34, v35\nv_add_f32 v32, v32, v34')
            p.i('v_cvt_pk_bf16_f32 v36, v32, v32\nv_and_b32 v33, 0xffff0000, v36\nv_sub_f32 v33, v32, v33\nv_cvt_pk_bf16_f32 v37, v33, v33')
            p.wvm(tb1)
            p.i(f'''
            v_lshl_add_u32 v38, v15, 16, v15
            v_mov_b32 v39, s76
            s_lshl_b32 s56, s62, 10
            s_add_u32 s56, s56, {AEXT}
            s_or_b32 s56, s56, s63''')
            p.vm('buffer_store_dwordx4 v[36:39], v1, s[44:47], s56 offen sc1')
        p.stamp('b')
    tile2(p,'F'); w2f_base(p)
    p.i(f'''
    v_bfe_u32 v8, v0, 2, 2
    v_and_b32 v9, 1, v0
    v_lshl_add_u32 v8, v9, 3, v8
    v_bfe_u32 v9, v0, 4, 1
    v_bfe_u32 v22, v0, 1, 1
    v_lshl_add_u32 v9, v9, 1, v22
    v_lshlrev_b32 v14, 2, v22
    v_xor_b32 v14, v14, v8
    v_xor_b32 v14, s3, v14
    v_mul_u32_u24 v9, 20480, v9
    v_lshl_add_u32 v9, v8, 8, v9
    v_lshrrev_b32 v22, 5, v0
    v_lshl_add_u32 v9, v22, 3, v9
    v_and_b32 v24, 31, v0
    v_lshlrev_b32 v24, 4, v24
    v_lshl_add_u32 v24, v22, 14, v24
    s_lshl_b32 s81, s3, 15
    s_lshl_b32 s57, s61, 9
    s_add_u32 s81, s81, s57
    s_add_u32 s81, s81, {XNT}''')
    for k in range(4): p.i(f'v_xor_b32 v22, {4*k}, v14\nv_lshl_add_u32 v{16+k}, v22, 4, v9')
    tn={}
    def nrd(t):
        b=160+4*(t%4)
        p.ds(f'ds_read_b64_tr_b16 v[{b}:{b+1}], v{16+(t&3)} offset:{(t>>2)*4096}')
        tn[t]=p.ds(f'ds_read_b64_tr_b16 v[{b+2}:{b+3}], v{16+((t&3)^1)} offset:{(t>>2)*4096+1024}')
    TC=int(p.opt.get('ftc',4))
    for t in range(3): nrd(t)
    p.wds(tl)
    for t in range(20):
        if t==TC:
            while len(tw)<20: w1ld()
            colsum()
        if t+3<20: nrd(t+3)
        b=160+4*(t%4); o=184+4*(t%2)
        p.wds(tn[t])
        for k in range(4):
            p.i(f'v_lshlrev_b32 v{176+2*k}, 16, v{b+k}\nv_and_b32 v{177+2*k}, 0xffff0000, v{b+k}')
        w1ld()
        for k in range(4):
            p.i(f'v_pk_fma_f32 v[{176+2*k}:{177+2*k}], v[{176+2*k}:{177+2*k}], v[{44+2*k}:{45+2*k}], v[{52+2*k}:{53+2*k}]')
        for k in range(4): p.i(f'v_cvt_pk_bf16_f32 v{o+k}, v{176+2*k}, v{177+2*k}')
        p.i(f's_add_u32 s57, s81, {t*8*16384}')
        txn=p.vm(f'buffer_store_dwordx4 v[{o}:{o+3}], v24, s[44:47], s57 offen sc1')
    p.i(f's_lshl_b32 s58, s61, 7\ns_add_u32 s58, s58, {XNF}')
    p.wvm(txn); p.i('s_barrier')
    with W0(p): set_flag(p,'s58',60)
    p.stamp('d')
    if p.opt.get('stop')=='F':
        p.i('s_branch L_fin')
    else:
        if p.opt.get('stop')=='K': p.i('s_branch L_fin')
        w2f_poll(p,60)
        w2p_setup(p)
        for k in range(p.K1): w2p_load(p,k)
        p.i('s_branch L_noconv')
    p.pop()

def w2reg(it,m):
    k=W2ORD.index(it)*5+m
    if k<64: return f'a[{4*k}:{4*k+3}]'
    return f'v[{232+4*(k-64)}:{235+4*(k-64)}]'
W2ORD=list(range(14))
def step_bases(p, base, last, stride):
    p.i(f'''
    s_add_u32 s{last}, s{base}, {13*stride}
    s_cmp_lt_u32 s3, 2
    s_cselect_b32 s{last}, s{last}, {OOB:#x}''')
def step_soff(p, it, stride, first, base, last, tmp):
    if it==13: return f's{last}'
    if it==0: return f's{base}'
    if first: p.i(f's_add_u32 s{tmp}, s{base}, {it*stride}')
    return f's{tmp}'
def w2p_setup(p):
    p.i(f'''
    s_mul_i32 s90, s60, 276480
    s_mul_i32 s91, s3, 5120
    s_add_u32 s90, s90, s91
    s_add_u32 s90, s90, {W2P}
    v_add_u32 v2, 0x1000, v1''')
    step_bases(p,90,77,20480)
W2T={}
def w2p_load(p,k,first=False):
    it=W2ORD[k//5]; m=k%5
    so=step_soff(p,it,20480,m==0 or first,90,77,92)
    if p.opt.get('wfake'): so='s90'
    return p.vm(f'buffer_load_dwordx4 {w2reg(it,m)}, v{2 if m==4 else 1}, s[44:47], {so} offen '+(f'offset:{m*1024} ' if 0<m<4 else '')+'sc1', p.w2t.setdefault(k,Tok(f'w2_{k}')))

def finish(p):
    p.label('L_fin')
    if p.opt.get('dbgt'):
        base=int(p.opt['dbgt'])
        p.wvm0(); p.i('s_memrealtime s[96:97]\ns_memtime s[62:63]'); p.wds0()
        p.i(f's_sub_u32 s56, s2, {base}\ns_lshl_b32 s57, s3, 8\ns_add_u32 s56, s56, s57\ns_cmp_lt_u32 s56, 8\ns_cbranch_scc0 L_fin2\ns_lshl_b32 s56, s56, 3\nv_mov_b32 v4, s56\nv_mov_b32 v6, s94\ns_sub_u32 s96, s96, s94\ns_sub_u32 s62, s62, s68\ns_lshl_b32 s96, s96, 16\ns_or_b32 s96, s96, s62\nv_mov_b32 v7, s96\ns_mov_b64 exec, 1')
        p.vm('global_store_dwordx2 v4, v[6:7], s[30:31]'); p.wvm0()
        p.label('L_fin2')
    if p.opt.get('stamps'):
        p.wvm0()
        p.i('s_memtime s[64:65]\ns_memrealtime s[96:97]'); p.wds0()
        src=[f's{r}' for r in SP]+['s64']
        p.i(f's_lshl_b32 s56, s2, 2\ns_add_u32 s56, s56, s3\ns_lshl_b32 s56, s56, 7\ns_add_u32 s56, s56, {STAMP}\nv_mov_b32 v9, 0\ns_mov_b64 exec, 1')
        for q in range(5):
            for e in range(4):
                k=4*q+e
                if k<18: p.i(f's_sub_u32 s57, {src[k]}, s68\nv_mov_b32 v{4+e}, s57')
                else: p.i(f'v_mov_b32 v{4+e}, s{94 if k==18 else 96}')
            p.vm(f'buffer_store_dwordx4 v[4:7], v9, s[44:47], s56 offen offset:{16*q}')
            p.i('s_nop 1')
    p.i('s_endpgm')

def build(opt):
    import gen_g
    p=G(opt)
    prologue(p)
    if opt.get('ffirst'):
        p.i('s_branch L_G'); fpath(p); p.label('L_G'); p.push('G'); gen_g.gpath(p); p.pop(); finish(p)
    else:
        p.push('G'); gen_g.gpath(p); p.pop(); finish(p); fpath(p)
    p.label('L_codeend')
    ops=resolve_waits(p.ops)
    ops,npad=hazards(ops, opt.get('verbose'))
    ops,size,mis,pads=align8(ops)
    print(f'; hazard nops {npad}, code {size} B, misaligned8 {mis}, align pads {pads}', file=sys.stderr)
    hdr=open('parallel_sum__ssm_conv_s4d__mixer_channel_mlp__prompt.s.ref').read().split('; Override')[0]
    s=hdr+f'''; @launch grid=(256,1,1) block=(256,1,1) lds=163840
.amdgcn_target "amdgcn-amd-amdhsa--gfx950"
.text
.globl {NAME}
.p2align 8
.type {NAME},@function
{NAME}:
'''+render(ops)+f'''.section .rodata,"a"
.p2align 6
.amdhsa_kernel {NAME}
  .amdhsa_next_free_vgpr 512
  .amdhsa_next_free_sgpr 102
  .amdhsa_accum_offset 256
  .amdhsa_group_segment_fixed_size 0
  .amdhsa_kernarg_size 120
  .amdhsa_user_sgpr_count 2
  .amdhsa_user_sgpr_kernarg_segment_ptr 1
  .amdhsa_system_sgpr_workgroup_id_x 1
.end_amdhsa_kernel
'''
    return s

if __name__=='__main__':
    opt={}
    out=sys.argv[1]
    for a in sys.argv[2:]:
        k,_,v=a.partition('='); opt[k]=v if v else True
    open(out,'w').write(build(opt))
```
